```python
import torch

def _softmax(x, axis=-1):
    return torch.softmax(x, dim=axis)
def _gelu(x):
    return torch.nn.functional.gelu(x, approximate="tanh")
def _silu(x):
    return torch.nn.functional.silu(x)
def _sigmoid(x):
    return torch.sigmoid(x)
def _layernorm(x, axis=-1, eps=1e-5):
    m = x.mean(dim=axis, keepdim=True)
    v = x.var(dim=axis, keepdim=True, unbiased=False)
    return (x - m) / torch.sqrt(v + eps)
def _scatter_add(tgt, idx, src, axis=0):
    return tgt.clone().index_add_(axis, idx, src)
def _segment_sum(src, seg, n):
    out = torch.zeros((n,) + src.shape[1:], dtype=src.dtype)
    return out.index_add_(0, seg, src)
def _pad(x, pw):
    flat = tuple(v for pair in reversed(pw) for v in pair)
    return torch.nn.functional.pad(x, flat)

kernel_name = 'interleave_layers__linear_kernel_hedgehog__mixer_s_mlp__prompt'

def setup_inputs():

    _w = (lambda a: (lambda t: t.to(torch.bfloat16) if t.is_floating_point() else t)(torch.as_tensor(a)))
    def _A_setup():
        B, S, D, H = 1, 2048, 512, 32
        Dh = D // H
        return {
            "x": _w((lambda *s: torch.randn(*s, dtype=torch.bfloat16) * 0.05)(B, S, D)),
            "wqkv": _w((lambda *s: torch.randn(*s, dtype=torch.bfloat16) * 0.4)(D, 3 * D)),
            "w_phi": _w((lambda *s: torch.randn(*s, dtype=torch.bfloat16) * 0.4)(H, Dh, Dh) * (Dh ** -0.5)),
            "wo": _w((lambda *s: torch.randn(*s, dtype=torch.bfloat16) * 0.05)(D, D)),
        }
    _A_in = _A_setup()

    def _B_setup():
        B, S, D, F = 1, 2048, 512, 1792
        return {
            "x":  _w((lambda *s: torch.randn(*s, dtype=torch.bfloat16) * 0.05)(B, S, D)),
            "w1": _w((lambda *s: torch.randn(*s, dtype=torch.bfloat16) * 3.2)(D, D) * (D ** -0.5)),
            "w2": _w((lambda *s: torch.randn(*s, dtype=torch.bfloat16) * 3.2)(D, D) * (D ** -0.5)),
            "w3": _w((lambda *s: torch.randn(*s, dtype=torch.bfloat16) * 3.2)(D, F) * (D ** -0.5)),
            "w4": _w((lambda *s: torch.randn(*s, dtype=torch.bfloat16) * 3.2)(F, D) * (F ** -0.5)),
        }
    _B_in = _B_setup()

    return {
        "A_x": _A_in["x"],
        "A_wqkv": _A_in["wqkv"],
        "A_w_phi": _A_in["w_phi"],
        "A_wo": _A_in["wo"],
        "B_x": _B_in["x"],
        "B_w1": _B_in["w1"],
        "B_w2": _B_in["w2"],
        "B_w3": _B_in["w3"],
        "B_w4": _B_in["w4"],
    }

def reference(A_x, A_wqkv, A_w_phi, A_wo, B_x, B_w1, B_w2, B_w3, B_w4):
    def _A_ref(x, wqkv, w_phi, wo):
        B, S, D = x.shape
        H = 32; Dh = D // H
        qkv = (lambda x, *d: x.permute(*d))((x @ wqkv).reshape(B, S, 3, H, Dh), 2, 0, 3, 1, 4)
        q, k, v = qkv[0], qkv[1], qkv[2]
        pq = torch.einsum("bhsd,hdf->bhsf", q, w_phi)
        pk = torch.einsum("bhsd,hdf->bhsf", k, w_phi)
        phi_q = torch.concatenate([_softmax(pq, axis=-1), _softmax(-pq, axis=-1)], axis=-1)
        phi_k = torch.concatenate([_softmax(pk, axis=-1), _softmax(-pk, axis=-1)], axis=-1)
        kv = torch.einsum("bhsf,bhsd->bhfd", phi_k, v)
        z  = torch.einsum("bhsf->bhf", phi_k)
        num = torch.einsum("bhqf,bhfd->bhqd", phi_q, kv)
        den = torch.einsum("bhqf,bhf->bhq", phi_q, z)[..., None] + 1e-6
        o = num / den
        return (lambda x, *d: x.permute(*d))(o, 0, 2, 1, 3).reshape(B, S, D) @ wo

    def _B_ref(x, w1, w2, w3, w4):
        B, S, D = x.shape
        h = _gelu(_layernorm(x, axis=-1) @ w1)
        c = D // 4
        g0 = _pad(h[:, :, 0*c:1*c], ((0, 0), (1, 0), (0, 0)))[:, :S, :]
        g1 = _pad(h[:, :, 1*c:2*c], ((0, 0), (0, 1), (0, 0)))[:, 1:, :]
        g2 = _pad(h[:, :, 2*c:3*c], ((0, 0), (2, 0), (0, 0)))[:, :S, :]
        g3 = _pad(h[:, :, 3*c:   ], ((0, 0), (0, 2), (0, 0)))[:, 2:, :]
        hs = torch.concatenate([g0, g1, g2, g3], axis=-1) @ w2
        x1 = x + hs
        h2 = _gelu(_layernorm(x1, axis=-1) @ w3) @ w4
        return x1 + h2

    x = A_x
    x = x + _A_ref(_layernorm(x, axis=-1), A_wqkv, A_w_phi, A_wo)
    x = x + _B_ref(_layernorm(x, axis=-1), B_w1, B_w2, B_w3, B_w4)
    x = x + _A_ref(_layernorm(x, axis=-1), A_wqkv, A_w_phi, A_wo)
    x = x + _B_ref(_layernorm(x, axis=-1), B_w1, B_w2, B_w3, B_w4)
    return x
```

```python
import re

TRANS = ("v_exp_f32", "v_log_f32", "v_rcp_f32", "v_rsq_f32", "v_sqrt_f32", "v_sin_f32", "v_cos_f32")
REG_RE = re.compile(r"(?<![\w.])(-?\|?)([vs])(\d+|\[\d+:\d+\])|\b(vcc|exec|m0|vcc_lo|vcc_hi|exec_lo|exec_hi)\b")


def regs_of(op):
    out = set()
    for m in REG_RE.finditer(op):
        if m.group(4):
            nm = m.group(4)
            out.add(("x", nm.split("_")[0]))
        else:
            k, r = m.group(2), m.group(3)
            if r.startswith("["):
                a, b = r[1:-1].split(":")
                for i in range(int(a), int(b) + 1):
                    out.add((k, i))
            else:
                out.add((k, int(r)))
    return out


class Ins:
    __slots__ = ("text", "mn", "ops", "kind", "rd", "wr", "passes", "srcc", "srcab", "label", "target", "ws", "wide", "data")

    def __init__(self, text):
        self.text = text
        self.label = None
        self.target = None
        self.rd = set()
        self.wr = set()
        self.passes = 0
        self.srcc = set()
        self.srcab = set()
        self.ws = 1
        self.wide = False
        self.data = set()
        t = text.split(";")[0].strip()
        if t.endswith(":"):
            self.kind = "label"
            self.label = t[:-1]
            self.mn = ""
            self.ws = 0
            return
        if t.startswith(".") or not t:
            self.kind = "dir"
            self.mn = ""
            self.ws = 0
            return
        m_ = re.search(r"op_sel:\[(\d),(\d)(?:,(\d))?\]", t)
        assert not (t.startswith("v_pk_") and m_ and (m_.group(2) == "1" or m_.group(3) == "1")), "unsafe op_sel: " + t
        parts = t.split(None, 1)
        mn = parts[0]
        self.mn = mn
        rest = parts[1] if len(parts) > 1 else ""
        ops, depth, cur = [], 0, ""
        for ch in rest:
            if ch in "[(":
                depth += 1
            if ch in "])":
                depth -= 1
            if ch == "," and depth == 0:
                ops.append(cur.strip())
                cur = ""
            else:
                cur += ch
        if cur.strip():
            ops.append(cur.strip())
        ops = [re.sub(r"\b(op_sel|op_sel_hi|neg_lo|neg_hi|offset|offset0|offset1):\S+", "", o) for o in ops]
        self.ops = ops
        R = [regs_of(o) for o in ops]
        allr = set().union(*R) if R else set()
        if mn.startswith("v_mfma"):
            self.kind = "mfma"
            self.passes = 8 if "32x32x16" in mn else 4
            self.wr = R[0]
            self.srcab = R[1] | R[2]
            self.srcc = R[3]
            self.rd = self.srcab | self.srcc
        elif mn.startswith("v_"):
            self.kind = "valu"
            if mn in TRANS:
                self.kind = "trans"
            if mn.startswith("v_dot2"):
                self.kind = "dot"
            self.wr = set(R[0])
            self.rd = set().union(*R[1:]) if len(R) > 1 else set()
            if mn.startswith(("v_permlane", "v_swap")):
                self.wr = R[0] | R[1]
                self.rd = R[0] | R[1]
            if mn.startswith(("v_dot2c", "v_fmac")):
                self.rd |= R[0]
            if mn.startswith(("v_add_co", "v_addc_co", "v_sub_co")):
                self.wr |= R[1]
                self.rd = set().union(*R[2:])
            if mn.startswith("v_cmpx"):
                self.wr.add(("x", "exec"))
        elif mn.startswith("ds_"):
            self.kind = "ds"
            if mn.startswith(("ds_read", "ds_bpermute", "ds_permute", "ds_swizzle")) or "_rtn" in mn:
                self.wr = R[0]
                self.rd = set().union(*R[1:])
            else:
                self.rd = allr
        elif mn.startswith(("buffer_", "global_")):
            self.kind = "vmem"
            is_lds = bool(re.search(r"\blds\b", rest)) or "load_lds" in mn
            if mn.startswith(("buffer_wbl2", "buffer_inv")):
                pass
            elif "load" in mn and not is_lds:
                self.wr = R[0]
                self.rd = set().union(*R[1:])
                if "d16" in mn:
                    self.rd |= R[0]
            else:
                self.rd = allr
                if is_lds:
                    self.rd.add(("x", "m0"))
                    self.kind = "vmemlds"
                if "store" in mn and ("x4" in mn or "x3" in mn):
                    self.wide = True
                    self.data = R[0] if mn.startswith("buffer_") else R[1]
        elif mn.startswith("s_"):
            self.kind = "salu"
            if mn == "s_nop":
                self.ws = int(ops[0], 0) + 1
            elif mn.startswith(("s_branch", "s_cbranch")):
                self.kind = "branch"
                self.target = ops[0]
            elif mn == "s_call_b64":
                self.kind = "call"
                self.target = ops[1]
                self.wr = R[0]
            elif mn.startswith(("s_cmp", "s_bitcmp", "s_waitcnt", "s_setprio", "s_sleep", "s_barrier", "s_endpgm", "s_setpc")):
                self.rd = allr
            elif mn.startswith(("s_load", "s_memtime", "s_memrealtime")):
                self.kind = "smem"
                self.wr = R[0]
                self.rd = set().union(*R[1:]) if len(R) > 1 else set()
            else:
                self.wr = set(R[0])
                self.rd = set().union(*R[1:]) if len(R) > 1 else set()
                if "saveexec" in mn:
                    self.wr.add(("x", "exec"))
        else:
            raise ValueError("unknown instruction: " + text)


VALUISH = ("valu", "trans", "dot")


def need_ws(p, c):
    n = 0
    pv = {r for r in p.wr if r[0] == "v"}
    ps = {r for r in p.wr if r[0] != "v"}
    if p.kind == "mfma":
        big = p.passes == 8
        if c.kind == "mfma":
            if pv & c.srcab:
                n = max(n, 12 if big else 8)
            if pv & c.srcc:
                if not (c.srcc == pv and c.passes == p.passes):
                    n = max(n, 10 if big else 6)
            elif pv & c.wr:
                n = max(n, 10 if big else 6)
        elif c.kind in VALUISH or c.kind in ("ds", "vmem", "vmemlds"):
            if pv & (c.rd | c.wr):
                n = max(n, 12 if big else 8)
            if c.kind in VALUISH and (p.srcc & c.wr):
                n = max(n, 7 if big else 3)
    if p.kind in VALUISH:
        if c.kind == "mfma" and (pv & c.rd):
            n = max(n, 3 if p.kind == "dot" else 2)
        if c.kind == "mfma" and ("x", "exec") in ps:
            n = max(n, 4)
        if c.kind in VALUISH:
            if c.mn.startswith("v_permlane") and (pv & c.rd):
                n = max(n, 2)
            if c.mn.startswith(("v_readfirstlane", "v_readlane")) and (pv & c.rd):
                n = max(n, 1)
            if ps & c.rd:
                n = max(n, 2)
            if p.kind == "trans" and c.kind != "trans" and (pv & c.rd):
                n = max(n, 1)
            if p.kind == "trans" and c.kind == "trans" and (pv & c.rd):
                n = max(n, 1)
            if p.kind == "dot" and (pv & (c.rd | c.wr)):
                if not (c.mn == p.mn and c.wr == p.wr and not (pv & set().union(*[regs_of(o) for o in c.ops[1:3]]))):
                    n = max(n, 3)
            if "op_sel" in p.text and not p.mn.startswith("v_pk") and (pv & (c.rd | c.wr)):
                n = max(n, 1)
        if c.kind in ("vmem", "vmemlds") and (ps & c.rd):
            n = max(n, 5)
        if c.kind in ("ds", "vmem", "vmemlds") and p.kind in ("dot", "trans") and (pv & c.rd):
            n = max(n, 3 if p.kind == "dot" else 1)
        if c.kind in ("salu", "branch", "smem") and (ps & c.rd):
            n = max(n, 2)
        if c.kind == "branch" and ("vcc" in c.mn and ("x", "vcc") in ps or "exec" in c.mn and ("x", "exec") in ps):
            n = max(n, 5)
    if p.kind == "salu":
        if ("x", "m0") in ps and c.kind == "vmemlds":
            n = max(n, 1)
    if p.wide and (p.data & c.wr):
        n = max(n, 2)
    if p.kind == "ds" and p.mn.startswith(("ds_write_b128", "ds_write_b96")) and (p.rd & c.wr) and c.kind in VALUISH:
        n = max(n, 2)
    return n


class Asm:
    def __init__(self):
        self.ins = []
        self.uid = 0

    def I(self, text):
        for ln in text.strip().split("\n"):
            ln = ln.strip()
            if ln and not ln.startswith(";"):
                self.ins.append(Ins(ln))

    def label(self, name):
        self.ins.append(Ins(name + ":"))

    def newlabel(self, base="L"):
        self.uid += 1
        return "%s_%d" % (base, self.uid)

    def finalize(self):
        ins = self.ins
        n = len(ins)
        lab = {x.label: i for i, x in enumerate(ins) if x.kind == "label"}
        srcs = {}
        rets = {}
        for i, x in enumerate(ins):
            if x.kind in ("branch", "call"):
                assert x.target in lab, "undefined label " + x.target
                srcs.setdefault(lab[x.target], []).append(i)
        pad = [0] * n
        LIM = 13

        def walk(i, c, dist, seen):
            best = 0
            stack = [(i, dist)]
            while stack:
                j, d = stack.pop()
                if j < 0 or d >= LIM:
                    continue
                if (j, d) in seen:
                    continue
                seen.add((j, d))
                p = ins[j]
                if p.kind not in ("label", "dir"):
                    need = need_ws(p, c) - d
                    if need > best:
                        best = need
                nd = d + p.ws + pad[j]
                if p.kind == "label":
                    for s in srcs.get(j, []):
                        stack.append((s, d))
                if j > 0:
                    q = ins[j - 1]
                    if not (q.mn in ("s_branch", "s_endpgm", "s_setpc_b64")):
                        stack.append((j - 1, nd))
            return best

        for i, c in enumerate(ins):
            if c.kind in ("label", "dir"):
                continue
            if i == 0:
                continue
            q = ins[i - 1]
            if q.mn in ("s_branch", "s_endpgm", "s_setpc_b64"):
                continue
            pad[i] = walk(i - 1, c, 0, set())
        out = []
        nn = 0
        for i, x in enumerate(ins):
            if pad[i] > 0:
                out.append("    s_nop %d" % (pad[i] - 1))
                nn += 1
            if x.kind == "label":
                out.append(x.text)
            else:
                out.append("    " + x.text)
        self.nops = nn
        return "\n".join(out)


class Q:
    def __init__(self, name, maxv):
        self.name = name
        self.maxv = maxv
        self.n = 0
        self.done = 0
        self.tags = {}

    def issue(self, tag=None):
        self.n += 1
        if tag is not None:
            self.tags[tag] = self.n
        return self.n

    def cnt_for(self, tag):
        idx = self.tags[tag] if not isinstance(tag, int) else tag
        if idx <= self.done:
            return None
        c = min(self.n - idx, self.maxv)
        self.done = self.n - c
        return c

    def drain(self):
        self.done = self.n


WIDEN = ("v_mov_b32", "v_add_f32", "v_sub_f32", "v_mul_f32", "v_max_f32", "v_min_f32", "v_exp_f32", "v_rcp_f32", "v_rsq_f32",
         "v_and_b32", "v_or_b32", "v_xor_b32", "v_lshlrev_b32", "v_lshrrev_b32", "v_add_u32", "v_min_u32", "v_max_u32",
         "v_mul_u32_u24", "v_not_b32", "v_cmp_le_u32", "v_cmp_eq_u32", "v_cndmask_b32")


def align8(body, minrun_widen=1, minrun_nop=6):
    import subprocess, tempfile, os
    lines = body.split("\n")
    src = '.amdgcn_target "amdgcn-amd-amdhsa--gfx950"\n.text\n.p2align 8\n' + body + "\n"
    d = tempfile.mkdtemp()
    open(d + "/a.s", "w").write(src)
    subprocess.run(["clang", "-x", "assembler", "-target", "amdgcn-amd-amdhsa", "-mcpu=gfx950", "-c", d + "/a.s", "-o", d + "/a.o"], check=True)
    out = subprocess.run(["llvm-objdump", "-d", "--mcpu=gfx950", d + "/a.o"], capture_output=True, text=True, check=True).stdout
    sizes = [4 * len(m.group(1).split()) for m in re.finditer(r"// [0-9A-F]{12}: ([0-9A-F ]+?)(?:\s*<|\s*$)", out, re.M)]
    idx = [i for i, l in enumerate(lines) if l.startswith("    ") and not l.strip().startswith(".")]
    assert len(sizes) == len(idx), (len(sizes), len(idx))
    off = 0
    nw = nn = 0
    lits = set()
    res = list(lines)
    for k, i in enumerate(idx):
        if sizes[k] == 8 and off % 8 == 4:
            run = 0
            while k + run < len(idx) and sizes[k + run] == 8:
                run += 1
            cand = None
            b = 1
            while b <= 7 and k - b >= 0 and sizes[k - b] == 4:
                p_ = lines[idx[k - b]].strip()
                ok = p_.split()[0] in WIDEN or re.match(r"s_(mov_b32|add_u32|lshl_b32|lshr_b32|and_b32|cmp_\w+_[ui]32|sub_u32|mul_i32) .*, \d+$", p_)
                if ok and res[idx[k - b]] == lines[idx[k - b]] and (b % 2 == 1 or run >= 2):
                    if cand is None or (cand % 2 == 0 and b % 2 == 1):
                        cand = b
                b += 1
            if cand is not None and run >= minrun_widen:
                prev = lines[idx[k - cand]].strip()
                mn = prev.split()[0]
                if mn.startswith("v_"):
                    res[idx[k - cand]] = "    " + prev.replace(mn, mn + "_e64", 1)
                else:
                    res[idx[k - cand]] = "    " + re.sub(r"(\d+)$", r"LITB-LITA+\1", prev)
                    lits.add(int(re.search(r"(\d+)$", prev).group(1)))
                sizes[k - cand] = 8
                off += 4
                nw += 1
            elif run >= minrun_nop:
                res[i] = "    s_nop 0\n" + res[i]
                off += 4
                nn += 1
        off += sizes[k]
    res += ["LITA:", "LITB:"]
    return "\n".join(res), nw, nn
```

```python
import struct, sys, math, argparse
from asmlib import Asm, Q, align8

ap = argparse.ArgumentParser()
ap.add_argument("-o", default="interleave_layers__linear_kernel_hedgehog__mixer_s_mlp__prompt.s")
ap.add_argument("--ts", action="store_true", help="diagnostic build with timestamps")
ap.add_argument("--slow", action="store_true", help="force sc1 mode")
ap.add_argument("--lag", type=int, default=2)
ap.add_argument("--na0", type=int, default=8)
ap.add_argument("--adepth", type=int, default=8)
ap.add_argument("--p5a", type=int, default=4)
ap.add_argument("--p5fill", type=int, default=3)
ap.add_argument("--rel1", type=int, default=0)
ap.add_argument("--rel6", type=int, default=6)
ap.add_argument("--rel6at", type=int, default=40)
ap.add_argument("--kvf", type=int, default=15)
ap.add_argument("--nrel_at", type=int, default=12)
ap.add_argument("--rel1at", type=int, default=44)
ap.add_argument("--rel5at", type=int, default=0)
ap.add_argument("--wnt", default="")
ap.add_argument("--hold", type=int, default=2)
ap.add_argument("--q1", type=int, default=4)
ap.add_argument("--f5at", type=int, default=24)
ap.add_argument("--f6k", type=int, default=12)
ap.add_argument("--p6k", type=int, default=22)
ap.add_argument("--rla", type=int, default=2)
ap.add_argument("--q2", type=int, default=2)
ap.add_argument("--q3", type=int, default=2)
ap.add_argument("--qa", type=int, default=4)
ap.add_argument("--qb", type=int, default=4)
ap.add_argument("--xbar", type=int, default=-1)
ap.add_argument("--w0", type=int, default=8)
ap.add_argument("--l3at", type=int, default=3)
ap.add_argument("--inat", type=int, default=40)
ap.add_argument("--x1", type=int, default=6)
ap.add_argument("--glag", type=int, default=8)
ap.add_argument("--kla", type=int, default=2)
ap.add_argument("--gi", type=int, default=5)
ap.add_argument("--rk0", default="P0,L2,L3,H,P1,S0,P2,P3,S1,Q")
ap.add_argument("--qat", type=int, default=3)
ap.add_argument("--initg", type=int, default=0)
ap.add_argument("--gmode", type=int, default=1)
ap.add_argument("--gdirect", type=int, default=3)
ap.add_argument("--w6t", type=int, default=16)
ap.add_argument("--w6e", type=int, default=2)
ap.add_argument("--lprio", type=int, default=0)
ap.add_argument("--tprio", type=int, default=0)
ap.add_argument("--cprio", type=int, default=2)
ap.add_argument("--gearly", type=int, default=0)
ap.add_argument("--gskew", type=int, default=0)
ap.add_argument("--pro", default="", help="prologue kernel: empty | nop | pf")
ap.add_argument("--pr4", type=int, default=0)
ap.add_argument("--st3", type=int, default=1)
ap.add_argument("--pl5at", type=int, default=52)
ap.add_argument("--qp2", type=int, default=2)
ap.add_argument("--rel3at", type=int, default=8)
ap.add_argument("--rel4at", type=int, default=8)
ap.add_argument("--p6k2", type=int, default=26)
ap.add_argument("--nin", type=int, default=0)
ap.add_argument("--a6a", type=int, default=8)
ap.add_argument("--w6b", type=int, default=0)
ap.add_argument("--q4", type=int, default=4)
ap.add_argument("--mile", default="")
ap.add_argument("--align", type=int, default=1)
ap.add_argument("--alnop", type=int, default=6)
ap.add_argument("--p1late", type=int, default=0)
ap.add_argument("--nap", type=int, default=0)
ap.add_argument("--lfoff", type=int, default=0)
ap.add_argument("--idlecb", type=int, default=3)
ap.add_argument("--wsoff", type=int, default=0, help="MB offset of the used workspace window")
ap.add_argument("--n0", type=int, default=16)
ap.add_argument("--n1", type=int, default=12)
ap.add_argument("--pp", type=int, default=1)
ap.add_argument("--n2", type=int, default=10)
ap.add_argument("--hsleep", type=int, default=2)
ap.add_argument("--csprio", type=int, default=0)
ap.add_argument("--b1first", type=int, default=1)
ap.add_argument("--kvdelay", type=int, default=3)
ap.add_argument("--fine", default="", help="phase:idx,idx,... fine stamps inside a loop")
ap.add_argument("--touch", default="0:K,Mwo,Mw1,A,ST,Q;p1:B,sMw3,F,K,Q,sB,F")
ap.add_argument("--layers", type=int, default=2)
ap.add_argument("--touch6", default="0:K;i4:DB,Q,HS,sMw2,sMw4,F,K,Q,sST,sA,F")
ap.add_argument("--r3la", type=int, default=2)
ap.add_argument("--w7at", type=int, default=2)
ap.add_argument("--dbgts", default="", help="16 comma separated stamp lanes to write to d_debug (diagnostic)")
ap.add_argument("--dump", default="")
ap.add_argument("--exp", default="", help="comma list of timing experiments (wrong results)")
args = ap.parse_args()
TS = args.ts
EXP = set(args.exp.split(","))
KN = "interleave_layers__linear_kernel_hedgehog__mixer_s_mlp__prompt_kernel"


def f2u(x):
    return struct.unpack("<I", struct.pack("<f", x))[0]


MB = 1 << 20
SGB = 0xE0000
O_A, O_B, O_H, O_C, O_ST = 0x8000, 0x38000, 0, 0x60000, 0xD0000
HLY = 192 * 1024
WS_KVP, WS_ZP = 18 * MB, 19 * MB
WS_LF, WS_GF, WS_HF = 19 * MB + 0x40000 + args.lfoff, 19 * MB + 0x50000, 19 * MB + 0x60000
WS_EP, WS_IM, WS_IS = WS_GF + 0x4000, WS_GF, WS_GF + 0x1000
WS_TS = 23 * MB
WS_SIZE = 24 * MB if not args.dump else 64 * MB
CRB = 112 * 1024
STK = 16 * 1024
STG_PHI, STG_V, MISC = 131072, 147456, 155648
PHI_IMG = MISC
KVT = MISC + 2048
ZT = KVT + 2560
ZERO = ZT + 128
CNT = ZERO + 128
CS = CNT + 128
CS_W3 = CS + 1536
CS_W1 = CS_W3 + 1024
assert CS_W1 + 512 <= 163840
assert (CNT + 16) % 16 == 0
C_GI, C_PH, C_CS3 = 44, 120, 112
C_F, C_D, C_HV, C_CSQ, C_SY, C_GO, C_CSA, C_PG, C_CSB, C_CO, C_H = 0, 16, 32, 40, 48, 64, 68, 72, 76, 80, 96
LDS_BYTES = 163840
CH_P1A, CH_P1B, CH_P2, CH_P3, CH_P4, CH_P5, CH_P6, CH_N = 0, 4, 6, 10, 14, 18, 26, 40
sX, sWQKV, sWPHI, sWO, sW1, sW2, sW3, sW4, sOUT, sDBG, sWSP = 16, 18, 20, 22, 26, 28, 30, 32, 34, 36, 38
sSG, sM, sW, sRH, sCB, sRB, sLAYER, sMODE, sHAVE, sCBASE, sFBASE = range(40, 51)
sT0, sT1, sT2, sNEED, sSPIN = 51, 52, 53, 54, 55
sRET = 56
sHMASK = 58
sHON, sHDST, sHFLG = 60, 61, 62
sA, sB, sH, sC, sST, sLFME, sLFSG, sSEQ = 63, 64, 65, 66, 67, 68, 69, 70
sU0, sU1, sU2, sU3 = 71, 72, 73, 74
sONES = 75
sMH, sKH = 76, 77
sPREV, sNEXT = 78, 79
sTSP = 80
sKV, sZP = 82, 83
sPX, sTILE, sKOFF, sOWN, sROWOFF, sGF = 84, 85, 86, 87, 88, 89
sISS, sPUB, sFREE, sD1, sJ1, sSOFF, sNCH, sSTR, sXX, sJ2, sCOL, sLW = 84, 85, 86, 87, 88, 89, 90, 91, 92, 93, 94, 95
sWNEED = 96
sM5 = 3
vL16, vW16, vWN, vWH, vCNT, vCNTW, vREL, vTS = 0, 1, 2, 3, 4, 5, 6, 7
vT = 8
vWA = 10
vMR = 14
vXP, vX2P = 16, 24
vKEEP, vSEND, vKA, vKW = 32, 48, 64, 128
vWF, vACC, vA = 32, 64, 128
SPIN_G, SPIN_L = 400000, 4000000
HOLD = args.hold
QCH = (4, 5)
L2E = math.log2(math.e)
GC1 = -2.0 * math.sqrt(2.0 / math.pi) * L2E

a = Asm()
I = a.I
stubs = []
late = []


def vr(b, n=4):
    return "v[%d:%d]" % (b, b + n - 1)


def sr(b, n=2):
    return "s[%d:%d]" % (b, b + n - 1)


tsn = [0]
tsnames = []


def ts(name, lq=None, idx=None):
    if args.mile == name:
        S = a.newlabel("MI")
        I("s_cmp_eq_u32 s%d, 0" % sLAYER)
        I("s_cbranch_scc0 %s" % S)
        I("s_memrealtime s[92:93]")
        I("s_waitcnt lgkmcnt(0)")
        a.label(S)
    if not TS:
        return
    if "xts" in EXP and name in ("p2_xchg", "p2_loop", "p3_loop", "p4_loop", "p2_published", "p3_published", "p4_published", "p5_passA", "p5_geluA", "setup", "x0", "x3"):
        return
    k = tsn[0] if idx is None else idx
    if idx is None:
        tsn[0] += 1
        tsnames.append(name)
    I("s_mem%stime %s" % ("real" if "rt" in EXP else "", sr(sTSP)))
    I("s_waitcnt lgkmcnt(0)")
    if lq is not None:
        lq.drain()
    I("s_lshl_b32 s%d, s%d, 5" % (sTSP + 1, sLAYER))
    I("s_add_u32 s%d, s%d, %d" % (sTSP + 1, sTSP + 1, k))
    I("s_mov_b32 m0, s%d" % (sTSP + 1))
    I("s_nop 3")
    I("v_writelane_b32 v%d, s%d, m0 ; ts %s" % (vTS, sTSP, name))


hts_n = [1]


def hts(name):
    if not (TS and "hts" in EXP):
        return
    I("s_memtime s[100:101]")
    I("s_waitcnt lgkmcnt(0)")
    I("s_sub_u32 s100, s100, s97")
    I("v_writelane_b32 v255, s100, %d ; hts %s" % (hts_n[0], name))
    print("hts", hts_n[0], name, file=sys.stderr)
    hts_n[0] += 1


def ws_shift():
    if args.wsoff:
        I("s_add_u32 s%d, s%d, %d" % (sWSP, sWSP, args.wsoff * MB))
        I("s_addc_u32 s%d, s%d, 0" % (sWSP + 1, sWSP + 1))


def dump(tag, regs):
    if args.dump != tag:
        return
    I("s_waitcnt vmcnt(0) lgkmcnt(0)")
    I("s_nop 15")
    I("s_lshl_b32 s97, s2, 2")
    I("s_add_u32 s97, s97, s%d" % sW)
    I("s_lshl_b32 s97, s97, 14")
    I("s_add_u32 s97, s97, %d" % (32 * MB))
    I("v_lshrrev_b32 v%d, 2, v%d" % (vTS, vL16))
    for i, r in enumerate(regs):
        I("buffer_store_dword v%d, v%d, s[4:7], s97 offen" % (r, vTS))
        I("s_add_u32 s97, s97, 256")
    I("s_waitcnt vmcnt(0)")


def srd(base, ptr, nbytes):
    I("s_mov_b32 s%d, s%d" % (base, ptr))
    I("s_and_b32 s%d, s%d, 0xffff" % (base + 1, ptr + 1))
    I("s_mov_b32 s%d, %d" % (base + 2, nbytes))
    I("s_mov_b32 s%d, 0x20000" % (base + 3))


def waitcnt(vm=None, lg=None):
    p = []
    if vm is not None:
        p.append("vmcnt(%d)" % vm)
    if lg is not None:
        p.append("lgkmcnt(%d)" % lg)
    if p:
        I("s_waitcnt " + " ".join(p))


def spin_tail(L, lim):
    I("s_add_u32 s%d, s%d, 1" % (sSPIN, sSPIN))
    I("s_cmp_lt_u32 s%d, %d" % (sSPIN, lim))
    I("s_cbranch_scc1 %s" % L)
    I("s_branch ABORT")


def poll(vaddr, sneed, shadow=None, pp=False, nap=0):
    L, C, D = a.newlabel("POLL"), a.newlabel("POLLC"), a.newlabel("POLLD")
    ld = "buffer_load_dword v%d, v%d, s[4:7], 0 offen sc1" % (vaddr + 1, vaddr)
    if shadow:
        I(ld)
        shadow()
        I("s_mov_b32 s%d, 0" % sSPIN)
        I("s_branch %s" % C)
    else:
        I("s_mov_b32 s%d, 0" % sSPIN)
    if args.pp and pp:
        ld2 = "buffer_load_dword v%d, v%d, s[4:7], 0 offen sc1" % (vaddr + 2, vaddr)
        if not shadow:
            I(ld)
        a.label(C)
        a.label(L)
        I(ld2)
        I("s_waitcnt vmcnt(1)")
        I("v_cmp_le_u32 vcc, s%d, v%d" % (sneed, vaddr + 1))
        I("s_cmp_eq_u64 vcc, -1")
        I("s_cbranch_scc1 %s" % D)
        I(ld)
        I("s_waitcnt vmcnt(1)")
        I("v_cmp_le_u32 vcc, s%d, v%d" % (sneed, vaddr + 2))
        I("s_cmp_eq_u64 vcc, -1")
        I("s_cbranch_scc1 %s" % D)
        spin_tail(L, SPIN_G)
        a.label(D)
        return
    a.label(L)
    I(ld)
    a.label(C)
    I("s_waitcnt vmcnt(0)")
    I("v_cmp_le_u32 vcc, s%d, v%d" % (sneed, vaddr + 1))
    I("s_cmp_eq_u64 vcc, -1")
    I("s_cbranch_scc1 %s" % D)
    if nap:
        I("s_sleep %d" % nap)
    spin_tail(L, SPIN_G)
    a.label(D)


def lds_wait_ge(off, val, lq=None, vaddr=None, t=None):
    L, D = a.newlabel("LW"), a.newlabel("LWD")
    I("s_mov_b32 s%d, 0" % sSPIN)
    a.label(L)
    t = vT if t is None else t
    I("ds_read_b32 v%d, v%d offset:%d" % (t, vCNT if vaddr is None else vaddr, off))
    I("s_waitcnt lgkmcnt(0)")
    I("v_readfirstlane_b32 s%d, v%d" % (sT1, t))
    I("s_cmp_ge_u32 s%d, %s" % (sT1, val))
    I("s_cbranch_scc1 %s" % D)
    spin_tail(L, SPIN_L)
    a.label(D)
    if lq is not None:
        lq.drain()


def sync4(lq, t, shadow=None):
    L, D = a.newlabel("SY"), a.newlabel("SYD")
    I("s_add_u32 s%d, s%d, 1" % (sSEQ, sSEQ))
    I("v_mov_b32 v%d, s%d" % (vT, sSEQ))
    I("ds_write_b32 v%d, v%d offset:32" % (vCNTW, vT))
    if shadow:
        shadow()
    I("s_mov_b32 s%d, 0" % sSPIN)
    a.label(L)
    I("ds_read_b128 %s, v%d offset:%d" % (vr(t), vCNT, C_SY))
    I("s_waitcnt lgkmcnt(0)")
    I("v_min3_u32 v%d, v%d, v%d, v%d" % (t, t, t + 1, t + 2))
    I("v_min_u32 v%d, v%d, v%d" % (t, t, t + 3))
    I("v_readfirstlane_b32 s%d, v%d" % (sT1, t))
    I("s_cmp_ge_u32 s%d, s%d" % (sT1, sSEQ))
    I("s_cbranch_scc1 %s" % D)
    spin_tail(L, SPIN_L)
    a.label(D)
    lq.drain()


def consumed_check(lq):
    I("v_xor_b32 v%d, 8, v%d" % (vT + 1, vCNTW))
    lds_wait_ge(64, "s%d" % sPX, lq, vaddr=vT + 1)


def chk_issue(t):
    I("v_xor_b32 v%d, 8, v%d" % (t + 1, vCNTW))
    I("ds_read_b32 v%d, v%d offset:64" % (t, t + 1))
    lq.issue("chk")


def chk_test(t):
    D = a.newlabel("CK")
    waitcnt(None, lq.cnt_for("chk"))
    I("v_readfirstlane_b32 s%d, v%d" % (sT1, t))
    I("s_cmp_ge_u32 s%d, s%d" % (sT1, sPX))
    I("s_cbranch_scc1 %s" % D)
    lds_wait_ge(64, "s%d" % sPX, None, vaddr=t + 1, t=t)
    a.label(D)


def have_issue():
    I("ds_read_b64 %s, v%d offset:%d" % (vr(vT, 2), vCNT, C_HV))
    lq.issue("hv")


def have_take():
    waitcnt(None, lq.cnt_for("hv"))
    I("v_min_u32 v%d, v%d, v%d\nv_readfirstlane_b32 s%d, v%d" % (vT, vT, vT + 1, sHAVE, vT))
    I("s_sub_i32 s%d, s%d, s%d" % (sHAVE, sHAVE, sCBASE))


def late_checks(t, i0, chk=True):
    l = [(i0, 1, [have_issue]), (i0 + 4, 1, [have_take])]
    if chk:
        l += [(i0 + 1, 1, [lambda: chk_issue(t)]), (i0 + 5, 1, [lambda: chk_test(t)])]
    return l


def refresh_have(lq):
    I("ds_read_b64 %s, v%d offset:%d" % (vr(vT, 2), vCNT, C_HV))
    I("s_waitcnt lgkmcnt(0)")
    I("v_min_u32 v%d, v%d, v%d\nv_readfirstlane_b32 s%d, v%d" % (vT, vT, vT + 1, sHAVE, vT))
    I("s_sub_i32 s%d, s%d, s%d" % (sHAVE, sHAVE, sCBASE))
    lq.drain()


def exchange(lq, t, shadow=None):
    L, D = a.newlabel("XC"), a.newlabel("XCD")
    for q in range(4):
        I("ds_write_b128 v%d, %s offset:%d" % (t + 16, vr(vSEND + 4 * q), q * 1024))
    I("ds_write_b32 v%d, v%d offset:32" % (vCNTW, t + 19))
    I("s_mov_b32 s%d, 0" % sSPIN)
    if shadow:
        C = a.newlabel("XCC")
        I("ds_read_b32 v%d, v%d offset:32" % (t + 20, t + 18))
        for q in range(4):
            I("ds_read_b128 %s, v%d offset:%d" % (vr(t + 4 * q), t + 17, q * 1024))
        shadow()
        I("s_branch %s" % C)
    a.label(L)
    I("ds_read_b32 v%d, v%d offset:32" % (t + 20, t + 18))
    for q in range(4):
        I("ds_read_b128 %s, v%d offset:%d" % (vr(t + 4 * q), t + 17, q * 1024))
    if shadow:
        a.label(C)
    I("s_waitcnt lgkmcnt(4)")
    I("v_readfirstlane_b32 s%d, v%d" % (sT1, t + 20))
    I("s_cmp_ge_u32 s%d, s%d" % (sT1, sSEQ))
    I("s_cbranch_scc1 %s" % D)
    spin_tail(L, SPIN_L)
    a.label(D)
    for q in range(4):
        I("s_waitcnt lgkmcnt(%d)" % (3 - q))
        I("v_pk_add_f32 %s, %s, %s" % (vr(vKEEP + 4 * q, 2), vr(vKEEP + 4 * q, 2), vr(t + 4 * q, 2)))
        I("v_pk_add_f32 %s, %s, %s" % (vr(vKEEP + 4 * q + 2, 2), vr(vKEEP + 4 * q + 2, 2), vr(t + 4 * q + 2, 2)))
    I("ds_write_b32 v%d, v%d offset:64" % (vCNTW, t + 19))
    I("s_mov_b32 s%d, s%d" % (sPX, sSEQ))
    lq.drain()
    lq.issue()


def exchange_prep(t):
    return ["s_lshl_b32 s%d, s%d, 12" % (sT0, sW),
            "s_add_u32 s%d, s%d, %d" % (sT0, sT0, STG_PHI),
            "v_add_u32 v%d, s%d, v%d" % (t + 16, sT0, vL16),
            "v_xor_b32 v%d, 0x2000, v%d" % (t + 17, t + 16),
            "v_xor_b32 v%d, 8, v%d" % (t + 18, vCNTW),
            "s_add_u32 s%d, s%d, 1" % (sSEQ, sSEQ),
            "v_mov_b32 v%d, s%d" % (t + 19, sSEQ)]


def prog(k, lq_, t):
    I("s_lshl_b32 s97, s%d, 1" % sFBASE)
    I("s_add_u32 s97, s97, %d" % k)
    I("v_mov_b32 v%d, s97" % t)
    I("ds_max_u32 v%d, v%d offset:%d" % (vCNT, t, C_PG))
    if lq_ is not None:
        lq_.issue()


def need(c):
    S, B = a.newlabel("NW"), a.newlabel("NWB")
    I("s_cmp_gt_i32 s%d, %d" % (sHAVE, c))
    I("s_cbranch_scc0 %s" % S)
    a.label(B)
    stubs.append((S, c, B))


def release(lq, n=1):
    I("v_add_u32 v%d, %d, v%d" % (vREL, n, vREL))
    I("ds_write_b32 v%d, v%d" % (vCNTW, vREL))
    lq.issue()


def stores(lst, l1only=False):
    if args.slow:
        for s in lst:
            I(s + " sc1")
    else:
        F, E = a.newlabel("STF"), a.newlabel("STE")
        if l1only:
            I("s_add_u32 s97, s%d, s%d" % (sMODE, sLAYER))
            I("s_cmp_eq_u32 s97, 4")
        else:
            I("s_cmp_eq_u32 s%d, 3" % sMODE)
        I("s_cbranch_scc0 %s" % F)
        for s in lst:
            I(s)
        a.label(E)
        slowst.append((F, lst, E))


slowst = []


def publish(k, extra=None, cnt=0):
    I("s_add_u32 s%d, s%d, %d" % (sT0, sFBASE, k))
    I("v_mov_b32 v%d, s%d" % (vT, sT0))
    I("v_mov_b32 v%d, 0" % (vT + 1))
    I("s_mov_b64 exec, 1")
    if args.slow:
        I("s_waitcnt vmcnt(%d)" % cnt)
        I("buffer_store_dword v%d, v%d, s[4:7], s%d offen sc1" % (vT, vT + 1, sLFME))
    else:
        F, E = a.newlabel("STF"), a.newlabel("STE")
        I("s_cmp_eq_u32 s%d, 3" % sMODE)
        if "nodrain" not in EXP:
            I("s_waitcnt vmcnt(%d)" % cnt)
        I("s_cbranch_scc0 %s" % F)
        st = "buffer_store_dword v%d, v%d, s[4:7], s%d offen" % (vT, vT + 1, sLFME)
        I(st)
        a.label(E)
        slowst.append((F, [st], E))
    if extra:
        extra()
    I("s_mov_b64 exec, -1")


LEDGER = []
NCRED = [0]


def credit(n, back=0, exact=False):
    k = 0
    for st, j in LEDGER[:n]:
        if st is None:
            k += 1
            continue
        tg = st.tag(j)
        if tg not in st.lq.tags:
            break
        if st.lq.tags[tg] > st.lq.done:
            if st.issued - 1 - j < back and st.lq.n - st.lq.tags[tg] < 2 * back:
                break
            waitcnt(None, st.lq.cnt_for(tg))
        k += 1
    assert not exact or k == n, (k, n)
    if k:
        del LEDGER[:k]
        NCRED[0] += k
        release(lq, k)
    return k


class WStream:
    def __init__(self, frags, lq, aregs, slots, rel=True, doneed=True, half0=None, maxrel=None):
        self.slots = slots
        self.R = len(slots)
        self.f, self.lq, self.rel = frags, lq, rel
        self.aregs = aregs
        self.issued = 0
        self.half = half0
        self.needed = set()
        self.doneed = doneed
        self.maxrel = maxrel
        self.nrel = 0
        self.rf = None
        self.asyncrf = False
        self.swap = False
        self.limit = 1 << 30
        last = {}
        for i, fr in enumerate(frags):
            last[fr["chunk"]] = i
        self.torel = []
        mx = -1
        for c in sorted(last):
            mx = max(mx, last[c])
            self.torel.append(mx)

    def wreg(self, i):
        return self.slots[i % self.R]

    def tag(self, i):
        return ("w", id(self), i)

    def issue(self):
        i = self.issued
        if i >= len(self.f):
            return False
        if i >= self.limit:
            return True
        fr = self.f[i]
        c = fr["chunk"]
        if self.doneed and c not in self.needed:
            self.needed.add(c)
            if self.rf == c:
                waitcnt(None, self.lq.cnt_for(("rf", id(self), c)))
                I("v_min_u32 v%d, v%d, v%d\nv_readfirstlane_b32 s%d, v%d" % (vT, vT, vT + 1, sHAVE, vT))
                I("s_sub_i32 s%d, s%d, s%d" % (sHAVE, sHAVE, sCBASE))
            need(fr.get("chunk_need", c))
        if self.doneed and self.asyncrf and i + 4 < len(self.f):
            c2 = self.f[i + 4]["chunk"]
            if c2 not in self.needed and self.rf != c2:
                self.rf = c2
                I("ds_read_b64 %s, v%d offset:%d" % (vr(vT, 2), vCNT, C_HV))
                self.lq.issue(("rf", id(self), c2))
        off = fr["off"]
        if self.half is not None:
            slot = c % 8
            hf = slot // 4
            if hf != self.half:
                for r in self.aregs:
                    I("v_xor_b32 v%d, 0x%x, v%d" % (r, 0x18000 if self.swap else 0x10000, r))
                self.half = hf
            off += (slot % (2 if self.swap else 4)) * 16384
        w = self.wreg(i)
        if "half6" in EXP and len(self.f) == 112 and i >= 32 and (i % 5) < 3:
            self.lq.tags[self.tag(i)] = self.lq.n
            self.issued += 1
            return True
        if fr.get("lin"):
            I("ds_read_b128 %s, v%d offset:%d" % (vr(w), fr["areg"], off))
        else:
            I("ds_read_b64_tr_b16 %s, v%d offset:%d" % (vr(w, 2), fr["areg"], off))
            self.lq.issue()
            I("ds_read_b64_tr_b16 %s, v%d offset:%d" % (vr(w + 2, 2), fr["areg"], off + 512))
        self.lq.issue(self.tag(i))
        self.issued += 1
        return True

    def prologue(self, n=None):
        lim = min(self.R, len(self.f)) if n is None else min(self.R, len(self.f), self.issued + n)
        self.asyncrf = False
        self.rf = None
        while self.issued < lim:
            self.issue()

    def enter(self):
        for j in self.torel:
            LEDGER.append((self, j))
        return self

    def run(self, fills=(), nxt=None, quota=(), name=None):
        fills = [(f, n, list(l)) for f, n, l in fills]
        self.asyncrf = True
        if nxt is not None:
            nxt.asyncrf = True
        allow = 0
        for i, fr in enumerate(self.f):
            vm = fr["vm"]() if fr.get("vm") else None
            lg = self.lq.cnt_for(self.tag(i))
            waitcnt(vm, lg)
            if TS and name and args.fine.split(":")[0] == name:
                pts = [int(x) for x in args.fine.split(":")[1].split(",")]
                if i in pts:
                    I("s_memtime %s" % sr(FINE[pts.index(i)]))
            fr["mfma"](self.wreg(i))
            allow += sum(n for f, n in quota if f == i)
            if allow:
                allow -= credit(allow, back=5)
            if not self.issue() and nxt is not None and nxt.issued < args.nin:
                assert nxt.wreg(nxt.issued) == self.wreg(i)
                nxt.issue()
            if fr.get("post"):
                fr["post"]()
            for f, n, l in fills:
                if i >= f:
                    for _ in range(n):
                        if l:
                            x = l.pop(0)
                            x() if callable(x) else I(x)
        self.left = allow
        for f, n, l in fills:
            for x in l:
                x() if callable(x) else I(x)
        if TS and name and args.fine.split(":")[0] == name:
            I("s_waitcnt lgkmcnt(0)")
            for k, p in enumerate(args.fine.split(":")[1].split(",")):
                kk = tsn[0]
                tsn[0] += 1
                tsnames.append("f" + p)
                I("s_lshl_b32 s%d, s%d, 5" % (sTSP + 1, sLAYER))
                I("s_add_u32 s%d, s%d, %d" % (sTSP + 1, sTSP + 1, kk))
                I("s_mov_b32 m0, s%d" % (sTSP + 1))
                I("s_nop 3")
                I("v_writelane_b32 v%d, s%d, m0" % (vTS, FINE[k]))


FINE = [24, 90, 92, 94, 98, 22]


def capture(fn):
    n0 = len(a.ins)
    fn()
    o = []
    for x in a.ins[n0:]:
        if x.mn.startswith("s_cselect") and o:
            o[-1] += "\n" + x.text
        else:
            o.append(x.text)
    del a.ins[n0:]
    return o


def pair_red32(x, t):
    I("v_mov_b32 v%d, v%d" % (t, x))
    I("v_mov_b32 v%d, v%d" % (t + 1, x + 1))
    I("v_permlane32_swap_b32 v%d, v%d" % (x, t))
    I("v_permlane32_swap_b32 v%d, v%d" % (x + 1, t + 1))
    I("v_pk_add_f32 %s, %s, %s" % (vr(x, 2), vr(x, 2), vr(t, 2)))


def finish_stats(s, q, mean, rstd):
    I("v_mul_f32 v%d, 0x%x, v%d" % (mean, f2u(1.0 / 512), s))
    I("v_mul_f32 v%d, 0x%x, v%d" % (q, f2u(1.0 / 512), q))
    I("v_fma_f32 v%d, -v%d, v%d, v%d" % (q, mean, mean, q))
    I("v_max_f32 v%d, 0, v%d" % (q, q))
    I("v_add_f32 v%d, 0x%x, v%d" % (rstd, f2u(1e-5), q))
    I("v_rsq_f32 v%d, v%d" % (rstd, rstd))


def gelu_consts(r, kp, ri):
    I("v_rcp_f32 v%d, v%d" % (ri, r))
    I("v_mul_f32 v%d, v%d, v%d" % (kp + 1, r, r))
    I("v_mul_f32 v%d, 0x%x, v%d" % (kp, f2u(GC1), r))
    I("v_mul_f32 v%d, v%d, v%d" % (kp + 1, kp + 1, kp))
    I("v_mul_f32 v%d, 0x%x, v%d" % (kp + 1, f2u(0.044715), kp + 1))


def gelu8(b, t, kp, rip, rihi):
    o = []
    s = 1 if rihi else 0
    for j in range(4):
        o.append("v_pk_mul_f32 %s, %s, %s" % (vr(t + 2 * j, 2), vr(b + 2 * j, 2), vr(b + 2 * j, 2)))
    for j in range(4):
        o.append("v_pk_fma_f32 %s, %s, %s, %s op_sel:[1,0,0] op_sel_hi:[1,1,0]" % (vr(t + 2 * j, 2), vr(kp, 2), vr(t + 2 * j, 2), vr(kp, 2)))
    for j in range(4):
        o.append("v_pk_mul_f32 %s, %s, %s" % (vr(t + 2 * j, 2), vr(t + 2 * j, 2), vr(b + 2 * j, 2)))
    for j in range(8):
        o.append("v_exp_f32 v%d, v%d" % (t + j, t + j))
    for j in range(4):
        o.append("v_pk_fma_f32 %s, %s, %s, %s op_sel:[0,%d,%d] op_sel_hi:[1,%d,%d]" % (vr(t + 2 * j, 2), vr(t + 2 * j, 2), vr(rip, 2), vr(rip, 2), s, s, s, s))
    for j in range(8):
        o.append("v_rcp_f32 v%d, v%d" % (t + j, t + j))
    for j in range(4):
        o.append("v_pk_mul_f32 %s, %s, %s" % (vr(t + 2 * j, 2), vr(t + 2 * j, 2), vr(b + 2 * j, 2)))
    for j in range(4):
        o.append("v_cvt_pk_bf16_f32 v%d, v%d, v%d" % (b + j, t + 2 * j, t + 2 * j + 1))
    return o


def gelu16(b, t, kp, rip):
    g0 = gelu8(b, t, kp, rip, False)
    g1 = gelu8(b + 8, t + 8, kp, rip, False)
    sk = args.gskew
    o = list(g0[:sk])
    r0, r1 = g0[sk:], g1
    for i in range(max(len(r0), len(r1))):
        if i < len(r1):
            o.append(r1[i])
        if i < len(r0):
            o.append(r0[i])
    return o


def unpack(dst, src, n):
    for j in range(n):
        I("v_lshlrev_b32 v%d, 16, v%d" % (dst + 2 * j, src + j))
        I("v_and_b32 v%d, 0xffff0000, v%d" % (dst + 2 * j + 1, src + j))


def softmax(P, E, out, t, lr):
    for op, k in (("max", 0), ("min", 5)):
        for j in range(5):
            I("v_%s3_f32 v%d, v%d, v%d, v%d" % (op, t + k + j, P + 3 * j, P + 3 * j + 1, P + 3 * j + 2))
    for op, k in (("max", 0), ("min", 5)):
        I("v_%s3_f32 v%d, v%d, v%d, v%d" % (op, t + k, t + k, t + k + 1, P + 15))
        I("v_%s3_f32 v%d, v%d, v%d, v%d" % (op, t + k + 2, t + k + 2, t + k + 3, t + k + 4))
    I("v_max_f32 v%d, v%d, v%d" % (t, t, t + 2))
    I("v_min_f32 v%d, v%d, v%d" % (t + 2, t + 5, t + 7))
    I("v_mul_f32 v%d, -v%d, v%d" % (t, t, lr))
    I("v_mul_f32 v%d, v%d, v%d" % (t + 2, t + 2, lr))
    fm = []
    for j in range(8):
        fm.append("v_pk_fma_f32 %s, %s, %s, %s op_sel_hi:[1,0,0] neg_lo:[1,0,0] neg_hi:[1,0,0]" % (vr(E + 2 * j, 2), vr(P + 2 * j, 2), vr(lr, 2), vr(t + 2, 2)))
        fm.append("v_pk_fma_f32 %s, %s, %s, %s op_sel:[0,0,0] op_sel_hi:[1,0,0]" % (vr(P + 2 * j, 2), vr(P + 2 * j, 2), vr(lr, 2), vr(t, 2)))
    ex = []
    for j in range(8):
        ex += ["v_exp_f32 v%d, v%d" % (r, r) for r in (E + 2 * j, E + 2 * j + 1, P + 2 * j, P + 2 * j + 1)]
    ad = []
    for X, k in ((E, 6), (P, 2)):
        ad.append((9, "v_pk_add_f32 %s, %s, %s" % (vr(t + k, 2), vr(X, 2), vr(X + 2, 2))))
    for X, k in ((E, 6), (P, 2)):
        ad.append((17, "v_pk_add_f32 %s, %s, %s" % (vr(t + k + 2, 2), vr(X + 4, 2), vr(X + 6, 2))))
    for j, c in ((8, 21), (10, 25), (12, 29), (14, 33)):
        for X, k in ((E, 6), (P, 2)):
            kk = k + (2 if j in (10, 14) else 0)
            ad.append((c, "v_pk_add_f32 %s, %s, %s" % (vr(t + kk, 2), vr(t + kk, 2), vr(X + j, 2))))
    I(fm.pop(0))
    I(fm.pop(0))
    for n_, x in enumerate(ex):
        if fm:
            I(fm.pop(0))
        elif ad and ad[0][0] <= n_:
            I(ad.pop(0)[1])
        I(x)
    for c, x in ad:
        I(x)
    for k in (2, 6):
        I("v_pk_add_f32 %s, %s, %s" % (vr(t + k, 2), vr(t + k, 2), vr(t + k + 2, 2)))
    I("v_add_f32 v%d, v%d, v%d" % (t, t + 2, t + 3))
    I("v_add_f32 v%d, v%d, v%d" % (t + 1, t + 6, t + 7))
    I("v_rcp_f32 v%d, v%d" % (t, t))
    I("v_rcp_f32 v%d, v%d" % (t + 1, t + 1))
    for j in range(8):
        I("v_pk_mul_f32 %s, %s, %s op_sel_hi:[1,0]" % (vr(P + 2 * j, 2), vr(P + 2 * j, 2), vr(t, 2)))
    for j in range(8):
        I("v_cvt_pk_bf16_f32 v%d, v%d, v%d" % (out + j, P + 2 * j, P + 2 * j + 1))
    return


def softmax_neg(E, out, t):
    for j in range(8):
        I("v_pk_mul_f32 %s, %s, %s op_sel:[1,0] op_sel_hi:[1,1]" % (vr(E + 2 * j, 2), vr(t, 2), vr(E + 2 * j, 2)))
    for j in range(8):
        I("v_cvt_pk_bf16_f32 v%d, v%d, v%d" % (out + 8 + j, E + 2 * j, E + 2 * j + 1))


def lnfix_pack(acc, cs, mr, out, scale):
    for j in range(8):
        I("v_pk_fma_f32 %s, %s, %s, %s op_sel_hi:[1,0,1] neg_lo:[1,0,0] neg_hi:[1,0,0]" % (vr(acc + 2 * j, 2), vr(cs + 2 * j, 2), vr(mr, 2), vr(acc + 2 * j, 2)))
    if scale:
        for j in range(8):
            I("v_pk_mul_f32 %s, %s, %s op_sel:[1,0] op_sel_hi:[1,1]" % (vr(acc + 2 * j, 2), vr(mr, 2), vr(acc + 2 * j, 2)))
    for j in range(8):
        I("v_cvt_pk_bf16_f32 v%d, v%d, v%d" % (out + j, acc + 2 * j, acc + 2 * j + 1))


def mf32(d, x, y, c=None):
    I("v_mfma_f32_32x32x16_bf16 %s, %s, %s, %s" % (vr(d, 16), vr(x), vr(y), "0" if c == 0 else vr(d, 16)))


def mf16(d, x, y, c=None):
    I("v_mfma_f32_16x16x32_bf16 %s, %s, %s, %s" % (vr(d), vr(x), vr(y), "0" if c == 0 else vr(d)))


class ALoad:
    def __init__(self, n, sbase, base, ring, voff=lambda k: vL16, guard=False):
        self.n, self.sbase, self.base, self.ring, self.voff, self.guard = n, sbase, base, ring, voff, guard
        self.k = 0
        self.gate = None
        self.step = lambda k: 4096

    def reg(self, k):
        return self.base + 4 * (k % self.ring)

    def issue(self, cnt):
        cnt = min(cnt, self.n - self.k)
        if cnt <= 0:
            return
        for _ in range(cnt):
            k = self.k
            if self.gate and k in self.gate:
                self.gate[k]()
            if k % 4 == 0 and k > 0:
                I("s_add_u32 s%d, s%d, %d" % (self.sbase, self.sbase, self.step(k) & 0xffffffff))
            I("buffer_load_dwordx4 %s, v%d, s[4:7], s%d offen offset:%d sc1%s" % (vr(self.reg(k)), self.voff(k), self.sbase, (k % 4) * 1024, " nt" if (self.n == 56 and "h2nt" in EXP) else ""))
            vq.issue(("a", k))
            self.k += 1

    def post(self, ks):
        depth = min(args.adepth, self.ring - 1) if self.ring < self.n else args.adepth
        want = min(ks + 1 + depth, self.n) - self.k
        cnt = min(want, 2)
        if cnt > 0:
            if self.guard:
                S = a.newlabel("AG")
                I("s_cbranch_vccz %s" % S)
                self.issue(cnt)
                a.label(S)
            else:
                self.issue(cnt)


def stats_prep(kind, t):
    return ["v_mov_b32 v%d, 0" % t, "v_mov_b32 v%d, 0" % (t + 1),
            "v_and_b32 v%d, 0x1f0, v%d" % (t + 2, vL16), "v_lshrrev_b32 v%d, 9, v%d" % (t + 3, vL16),
            "v_lshl_or_b32 v%d, v%d, 2, v%d" % (t + 2, t + 3, t + 2), "s_add_u32 s%d, s%d, %d" % (sU1, sU3, kind * STK)]


def out_stats(pk, kind, t):
    for j in range(8):
        I("v_dot2c_f32_bf16 v%d, s%d, v%d" % (t, sONES, pk + j))
        I("v_dot2c_f32_bf16 v%d, v%d, v%d" % (t + 1, pk + j, pk + j))
    I("v_permlane32_swap_b32 v%d, v%d" % (t, t + 1))
    I("v_add_f32 v%d, v%d, v%d" % (t, t, t + 1))
    stores(["buffer_store_dword v%d, v%d, s[4:7], s%d offen" % (t, t + 2, sU1)])


def stats_load(kind, srb, d):
    I("s_lshl_b32 s%d, s%d, 12" % (sT0, srb))
    I("s_add_u32 s%d, s%d, s%d" % (sT0, sT0, sST))
    I("s_add_u32 s%d, s%d, %d" % (sT0, sT0, kind * STK))
    for q in range(4):
        I("buffer_load_dwordx4 %s, v%d, s[4:7], s%d offen offset:%d sc1" % (vr(d + 4 * q), vL16, sT0, q * 1024))
        vq.issue("st")


def stats_sum(d, s):
    waitcnt(vq.cnt_for("st"))
    for j in range(4):
        I("v_pk_add_f32 %s, %s, %s" % (vr(d + 2 * j, 2), vr(d + 2 * j, 2), vr(d + 8 + 2 * j, 2)))
    I("v_pk_add_f32 %s, %s, %s" % (vr(d, 2), vr(d, 2), vr(d + 4, 2)))
    I("v_pk_add_f32 %s, %s, %s" % (vr(d + 2, 2), vr(d + 2, 2), vr(d + 6, 2)))
    I("v_pk_add_f32 %s, %s, %s" % (vr(s, 2), vr(d, 2), vr(d + 2, 2)))


def aug_b(ssum, B, sc=1.0):
    I("v_mul_f32 v%d, 0x%x, v%d" % (B + 2, f2u(-sc / 512), ssum))
    I("v_cvt_pk_bf16_f32 v%d, v%d, 0" % (B + 1, B + 2))
    I("v_lshlrev_b32 v%d, 16, v%d" % (B + 3, B + 1))
    I("v_sub_f32 v%d, v%d, v%d" % (B + 3, B + 2, B + 3))
    I("v_cvt_pk_bf16_f32 v%d, v%d, v%d" % (B, B + 2, B + 3))
    I("v_mov_b32 v%d, 0" % (B + 2))
    I("v_mov_b32 v%d, 0" % (B + 3))


def aug_addr(t, base):
    I("v_lshrrev_b32 v%d, 2, v%d" % (t, vL16))
    I("v_add_u32 v%d, %d, v%d" % (t, base, t))


def aug_read(addr, A, nt, coff, cval, two=False, nowait=False):
    if not nowait:
        S = a.newlabel("CSK")
        I("s_cmp_eq_u32 s%d, 0" % sLAYER)
        I("s_cbranch_scc0 %s" % S)
        lds_wait_ge(coff, cval, t=A)
        a.label(S)
    for t in range(nt):
        if two:
            I("ds_read2st64_b32 %s, v%d offset0:%d offset1:%d" % (vr(A + 2 * t, 2), addr, 2 * t, 2 * t + 1))
        else:
            I("ds_read_b32 v%d, v%d offset:%d" % (A + 2 * t + 1, addr, t * 256))
        lq.issue("augcs")


def aug_a(A, nt, wait=True, two=False):
    if wait:
        waitcnt(None, lq.cnt_for("augcs"))
    I("v_mov_b32 v%d, 0" % (A + 2 * nt + 1))
    for t in range(nt):
        r = A + 2 * t
        if two:
            I("v_add_f32 v%d, v%d, v%d" % (r + 1, r, r + 1))
        I("v_cvt_pk_bf16_f32 v%d, v%d, v%d" % (r, r + 1, r + 1))
        I("v_and_b32 v%d, 0xffff0000, v%d" % (A + 2 * nt, r))
        I("v_sub_f32 v%d, v%d, v%d" % (r + 1, r + 1, A + 2 * nt))
        I("v_cvt_pk_bf16_f32 v%d, v%d, 0" % (r + 1, r + 1))


def poll_addr_BD(t, own):
    if own:
        sb = sOWN
    else:
        I("s_lshl_b32 s%d, s%d, 7" % (sT0, sKH))
        I("s_lshl_b32 s%d, s%d, 2" % (sT1, sMH))
        I("s_add_u32 s%d, s%d, s%d" % (sT0, sT0, sT1))
        I("s_add_u32 s%d, s%d, s%d" % (sT0, sT0, sLFSG))
        sb = sT0
    I("v_and_b32 v%d, 0x70, v%d" % (t, vL16))
    I("v_bfe_u32 v%d, v%d, 7, 1" % (t + 1, vL16))
    I("v_lshl_or_b32 v%d, v%d, 3, v%d" % (t, t + 1, t))
    I("v_add_u32 v%d, s%d, v%d" % (t, sb, t))


def poll_addr_A(t, per):
    I("s_lshl_b32 s%d, s%d, 7" % (sT0, sKH))
    I("s_lshl_b32 s%d, s%d, 2" % (sT1, sRB))
    I("s_add_u32 s%d, s%d, s%d" % (sT0, sT0, sT1))
    I("s_add_u32 s%d, s%d, s%d" % (sT0, sT0, sLFSG))
    I("v_and_b32 v%d, 0x70, v%d" % (t, vL16))
    if per < 8:
        I("v_cmp_eq_u32 vcc, %d, v%d" % (args.idlecb * 16, t))
        I("v_xor_b32 v%d, 16, v%d" % (t + 1, t))
        I("v_cndmask_b32 v%d, v%d, v%d, vcc" % (t, t, t + 1))
    I("v_add_u32 v%d, s%d, v%d" % (t, sT0, t))


def poll_addr_C(t):
    I("s_lshl_b32 s%d, s%d, 6" % (sT0, sKH))
    I("s_add_u32 s%d, s%d, s%d" % (sT1, sT0, sPREV))
    I("s_add_u32 s%d, s%d, s%d" % (sT2, sT0, sNEXT))
    I("s_add_u32 s%d, s%d, 32" % (sT2, sT2))
    I("s_add_u32 s%d, s%d, s%d" % (sT0, sT0, sOWN))
    I("v_and_b32 v%d, 0x30, v%d" % (t, vL16))
    I("v_bfe_u32 v%d, v%d, 6, 1" % (t + 1, vL16))
    I("v_lshl_or_b32 v%d, v%d, 3, v%d" % (t, t + 1, t))
    I("v_add_u32 v%d, s%d, v%d" % (t, sT0, t))
    I("v_and_b32 v%d, 0x10, v%d" % (t + 1, vL16))
    I("v_bfe_u32 v%d, v%d, 5, 1" % (t + 2, vL16))
    I("v_lshl_or_b32 v%d, v%d, 3, v%d" % (t + 1, t + 2, t + 1))
    I("s_mov_b64 exec, 0x0f00")
    I("v_add_u32 v%d, s%d, v%d" % (t, sT1, t + 1))
    I("s_mov_b64 exec, 0xf000")
    I("v_add_u32 v%d, s%d, v%d" % (t, sT2, t + 1))
    I("s_mov_b64 exec, -1")


a.label(KN)
I("s_cmp_ge_u32 s2, 256")
I("s_cbranch_scc1 DONE")
if TS or "pad" in EXP:
    I("s_memtime s[98:99]")
    I("s_memrealtime s[100:101]")
I("s_load_dwordx16 s[16:31], s[0:1], 0")
I("s_load_dwordx8 s[32:39], s[0:1], 64")
I("v_lshrrev_b32 v1, 6, v0")
I("v_and_b32 v8, 63, v0")
I("v_readfirstlane_b32 s%d, v1" % sW)
I("s_getpc_b64 s[58:59]")
a.label("PCREF")
I("s_lshr_b32 s%d, s2, 3" % sT1)
if "scode" not in EXP:
    I("v_and_b32 v9, 1, v8")
    I("v_lshl_or_b32 v9, v1, 1, v9")
    I("v_lshlrev_b32 v9, 7, v9")
    I("s_lshl_b32 s%d, s%d, 11" % (sT0, sT1))
    I("v_add_u32 v9, s%d, v9" % sT0)
    I("v_min_u32 v9, CODE_END-PCREF-4, v9")
    I("s_mov_b64 exec, 3")
    I("global_load_dword v6, v9, s[58:59]")
    I("s_mov_b64 exec, -1")
I("v_lshlrev_b32 v%d, 4, v8" % vL16)
I("s_and_b32 s%d, s2, 7" % sT0)
I("s_and_b32 s%d, s%d, 15" % (sM, sT1))
I("s_lshr_b32 s%d, s%d, 4" % (sT1, sT1))
I("s_lshl_b32 s%d, s%d, 1" % (sSG, sT0))
I("s_add_u32 s%d, s%d, s%d" % (sSG, sSG, sT1))
I("v_lshrrev_b32 v16, 3, v8")
I("v_and_b32 v17, 7, v8")
I("v_mov_b32 v28, 0")
I("v_lshlrev_b32 v18, 2, v8")
I("v_add_u32 v18, %d, v18" % ZERO)
I("ds_write_b32 v18, v28")
I("v_mov_b32 v29, 0")
I("v_lshlrev_b32 v18, 3, v8")
I("v_add_u32 v18, %d, v18" % (PHI_IMG + 1024))
I("ds_write_b64 v18, v[28:29]")
I("s_cmp_ge_u32 s%d, 4" % sW)
I("s_cbranch_scc1 HELPERS")
I("v_lshlrev_b32 v18, 10, v16")
I("v_lshl_or_b32 v18, v17, 4, v18")
I("s_lshl_b32 s%d, s%d, 12" % (sNEED, sW))
I("s_add_u32 s%d, s%d, %d" % (sNEED, sNEED, STG_PHI))
I("s_lshl_b32 s%d, s%d, 2" % (sU0, sSG))
I("s_add_u32 s%d, s%d, s%d" % (sU0, sU0, sW))
I("s_lshl_b32 s%d, s%d, 15" % (sU0, sU0))
I("s_add_u32 s%d, s%d, 8192" % (sU1, sU0))
I("s_add_u32 s%d, s%d, 16384" % (sU2, sU0))
I("s_add_u32 s%d, s%d, 24576" % (sU3, sU0))
I("s_mov_b32 s10, %d" % (2 * MB))
I("s_mov_b32 s11, 0x20000")
I("s_waitcnt lgkmcnt(0)")
ws_shift()
if args.xbar < 0:
    I("s_barrier")


def common_setup():
    I("s_lshr_b32 s%d, s%d, 3" % (sRH, sM))
    I("s_and_b32 s%d, s%d, 7" % (sCB, sM))
    I("s_mul_i32 s%d, s%d, 7" % (sM5, sRH))
    I("s_add_u32 s%d, s%d, s%d" % (sM5, sM5, sCB))
    I("s_cmp_gt_u32 s%d, %d" % (sCB, args.idlecb))
    I("s_subb_u32 s%d, s%d, 0" % (sM5, sM5))
    I("s_cmp_eq_u32 s%d, %d" % (sCB, args.idlecb))
    I("s_cselect_b32 s%d, 14, s%d" % (sM5, sM5))
    I("s_mov_b32 s%d, 0" % sLAYER)
    I("s_mov_b32 s%d, 0x3f803f80" % sONES)
    I("v_mov_b32 v%d, %d" % (vCNT, CNT))
    I("v_lshrrev_b32 v9, 4, v8")
    I("v_bfe_u32 v10, v8, 2, 2")
    I("v_and_b32 v11, 3, v8")
    I("v_lshl_add_u32 v12, v9, 3, v10")
    I("v_lshlrev_b32 v12, 7, v12")
    I("v_and_b32 v13, 2, v10")
    I("v_and_b32 v14, 1, v9")
    I("v_or_b32 v15, v13, v14")
    I("v_lshl_or_b32 v12, v15, 5, v12")
    I("v_lshl_or_b32 v%d, v11, 3, v12" % vW16)
    I("v_lshrrev_b32 v28, 5, v8")
    I("v_lshl_add_u32 v12, v28, 3, v10")
    I("v_lshlrev_b32 v12, 7, v12")
    I("v_or_b32 v15, v13, v28")
    I("v_lshrrev_b32 v29, 1, v11")
    I("v_and_b32 v30, 1, v11")
    I("v_lshl_or_b32 v12, v29, 3, v12")
    I("v_xor_b32 v31, v14, v15")
    I("v_lshl_or_b32 v%d, v31, 5, v12" % vWN)
    I("v_lshl_or_b32 v%d, v30, 4, v%d" % (vWN, vWN))
    I("v_xor_b32 v31, v30, v15")
    I("v_lshl_or_b32 v%d, v31, 5, v12" % vWH)
    I("v_lshl_or_b32 v%d, v14, 4, v%d" % (vWH, vWH))
    srd(4, sWSP, WS_SIZE)


vq, lq = Q("vm", 63), Q("lgkm", 15)
if TS and "xts" in EXP:
    I("s_memtime s[90:91]")
I("s_mov_b32 s8, s%d" % sX)
I("s_and_b32 s9, s%d, 0xffff" % (sX + 1))
if "noxt" not in EXP:
    I("s_lshl_b32 s%d, s%d, 4" % (sT0, sSG))
    I("s_add_u32 s%d, s%d, s%d" % (sT0, sT0, sM))
    I("s_lshl_b32 s%d, s%d, 2" % (sT0, sT0))
    I("s_add_u32 s%d, s%d, s%d" % (sT0, sT0, sW))
    I("s_lshl_b32 s%d, s%d, 11" % (sT0, sT0))
    I("v_lshlrev_b32 v19, 7, v8")
    I("s_mov_b64 exec, 0xffff")
    I("buffer_load_dword v6, v19, s[8:11], s%d offen" % sT0)
    I("s_mov_b64 exec, -1")
def x_issue(lo, hi):
    for cbk in range(lo, hi):
        for i in range(4):
            I("buffer_load_dwordx4 %s, v18, s[8:11], s%d offen offset:%d" % (vr(vA + 4 * (4 * cbk + i)), sU0 + i, cbk * 128))
            vq.issue(("x", cbk))


x_issue(0, args.x1)
common_setup()
I("s_setprio %d" % args.cprio)
if TS:
    I("v_mov_b32 v%d, 0" % vTS)
    I("v_writelane_b32 v%d, s100, 31" % vTS)
    I("v_writelane_b32 v%d, s%d, 0" % (vTS, 100 if "rt" in EXP else 98))
    tsn[0] += 1
    tsnames.append("start")
if TS and "xts" in EXP:
    I("s_waitcnt lgkmcnt(0)")
    I("v_writelane_b32 v%d, s90, 1" % vTS)
    tsn[0] += 1
    tsnames.append("karg")
ts("x_issued")
I("v_lshrrev_b32 v20, 5, v8")
I("v_xor_b32 v112, v17, v9")
I("v_lshlrev_b32 v112, 4, v112")
I("v_lshl_or_b32 v112, v16, 7, v112")
I("v_add_u32 v112, s%d, v112" % sNEED)
I("v_xor_b32 v113, 64, v112")
I("v_and_b32 v114, 31, v8")
I("v_bfe_u32 v115, v8, 1, 3")
I("v_xor_b32 v115, v115, v20")
I("v_lshlrev_b32 v115, 4, v115")
I("v_lshl_or_b32 v114, v114, 7, v115")
I("v_add_u32 v114, s%d, v114" % sNEED)
for u in range(1, 4):
    I("v_xor_b32 v%d, %d, v114" % (114 + u, u * 32))
vSUM = 96
I("v_mov_b32 v%d, 0" % vSUM)
I("v_mov_b32 v%d, 0" % (vSUM + 1))


def x_stats(cbk):
    waitcnt(None, lq.cnt_for(("xr", cbk)))
    for r in range(16):
        I("v_dot2c_f32_bf16 v%d, s%d, v%d" % (vSUM, sONES, vA + 16 * cbk + r))
        I("v_dot2c_f32_bf16 v%d, v%d, v%d" % (vSUM + 1, vA + 16 * cbk + r, vA + 16 * cbk + r))


I("s_and_b32 s%d, s%d, 1" % (sMH, sW))
I("s_lshr_b32 s%d, s%d, 1" % (sKH, sW))
I("s_lshl_b32 s%d, s%d, 1" % (sRB, sRH))
I("s_add_u32 s%d, s%d, s%d" % (sRB, sRB, sMH))
for r in (sHAVE, sCBASE, sFBASE, sSEQ, sPX):
    I("s_mov_b32 s%d, 0" % r)
I("s_mul_i32 s%d, s%d, %d" % (sH, sSG, SGB))
I("s_add_u32 s%d, s%d, %d" % (sA, sH, O_A))
I("s_add_u32 s%d, s%d, %d" % (sB, sH, O_B))
I("s_add_u32 s%d, s%d, %d" % (sC, sH, O_C))
I("s_add_u32 s%d, s%d, %d" % (sST, sH, O_ST))
I("s_lshl_b32 s%d, s%d, 8" % (sLFSG, sSG))
I("s_add_u32 s%d, s%d, %d" % (sLFSG, sLFSG, WS_LF))
I("s_lshl_b32 s%d, s%d, 2" % (sT0, sM))
I("s_add_u32 s%d, s%d, s%d" % (sT0, sT0, sW))
I("s_lshl_b32 s%d, s%d, 2" % (sLFME, sT0))
I("s_add_u32 s%d, s%d, s%d" % (sLFME, sLFME, sLFSG))
I("s_lshl_b32 s%d, s%d, 13" % (sKV, sT0))
I("s_add_u32 s%d, s%d, %d" % (sKV, sKV, WS_KVP))
I("s_lshl_b32 s%d, s%d, 10" % (sZP, sT0))
I("s_add_u32 s%d, s%d, %d" % (sZP, sZP, WS_ZP))
I("s_lshl_b32 s%d, s%d, 7" % (sGF, sT0))
I("s_add_u32 s%d, s%d, %d" % (sGF, sGF, WS_GF))
I("s_lshl_b32 s%d, s%d, 15" % (sKOFF, sRB))
I("s_lshl_b32 s%d, s%d, 12" % (sT0, sCB))
I("s_lshl_b32 s%d, s%d, 11" % (sT1, sKH))
I("s_add_u32 s%d, s%d, s%d" % (sT0, sT0, sT1))
I("s_add_u32 s%d, s%d, s%d" % (sTILE, sKOFF, sT0))
I("s_lshl_b32 s%d, s%d, 14" % (sT1, sKH))
I("s_add_u32 s%d, s%d, s%d" % (sKOFF, sKOFF, sT1))
I("s_lshl_b32 s%d, s%d, 2" % (sROWOFF, sSG))
I("s_add_u32 s%d, s%d, s%d" % (sROWOFF, sROWOFF, sRB))
I("s_lshl_b32 s%d, s%d, 15" % (sROWOFF, sROWOFF))
I("s_lshr_b32 s%d, s%d, 5" % (sT0, sT0))
I("s_add_u32 s%d, s%d, s%d" % (sROWOFF, sROWOFF, sT0))
I("v_and_b32 v19, 31, v8")
I("v_lshlrev_b32 v19, 10, v19")
I("v_lshrrev_b32 v20, 5, v8")
I("v_lshl_or_b32 v19, v20, 4, v19")
for s_ in range(2):
    I("buffer_load_dwordx4 %s, v19, s[8:11], s%d offen offset:%d" % (vr(120 + 4 * s_), sROWOFF, s_ * 32))
    vq.issue("xres")
I("s_lshl_b32 s%d, s%d, 7" % (sT0, sRH))
I("s_lshl_b32 s%d, s%d, 2" % (sT1, sMH))
I("s_add_u32 s%d, s%d, s%d" % (sT0, sT0, sT1))
I("s_add_u32 s%d, s%d, s%d" % (sOWN, sT0, sLFSG))
I("s_sub_u32 s%d, s%d, 4" % (sPREV, sOWN))
I("s_add_u32 s%d, s%d, 4" % (sNEXT, sOWN))
I("s_add_u32 s%d, s%d, 4" % (sT1, sLFSG))
I("s_cmp_eq_u32 s%d, 2" % sRB)
I("s_cselect_b32 s%d, s%d, s%d" % (sPREV, sT1, sPREV))
I("s_add_u32 s%d, s%d, 128" % (sT1, sLFSG))
I("s_cmp_eq_u32 s%d, 1" % sRB)
I("s_cselect_b32 s%d, s%d, s%d" % (sNEXT, sT1, sNEXT))
I("s_cmp_eq_u32 s%d, 0" % sRB)
I("s_cselect_b32 s%d, s%d, s%d" % (sPREV, sOWN, sPREV))
I("s_cmp_eq_u32 s%d, 3" % sRB)
I("s_cselect_b32 s%d, s%d, s%d" % (sNEXT, sOWN, sNEXT))
I("s_mov_b32 s%d, %d" % (sHDST, SGB - 4 * 32768))
I("s_mov_b32 s%d, 0xff000000" % sHMASK)
I("s_mov_b32 s%d, 0xff000000" % (sHMASK + 1))
I("s_bitcmp1_b32 s%d, 1" % sCB)
I("s_cbranch_scc1 HW_UP")
I("s_cmp_eq_u32 s%d, 3" % sRB)
I("s_cselect_b32 s%d, 1, 0" % sHON)
I("s_cmp_eq_u32 s%d, 15" % sSG)
I("s_cselect_b32 s%d, 0, s%d" % (sHON, sHON))
I("s_branch HW_E")
a.label("HW_UP")
I("s_mov_b32 s%d, %d" % (sHDST, (4 * 32768 - SGB) & 0xffffffff))
I("s_mov_b32 s%d, 0xff" % sHMASK)
I("s_mov_b32 s%d, 0xff" % (sHMASK + 1))
I("s_cmp_eq_u32 s%d, 0" % sRB)
I("s_cselect_b32 s%d, 1, 0" % sHON)
I("s_cmp_eq_u32 s%d, 0" % sSG)
I("s_cselect_b32 s%d, 0, s%d" % (sHON, sHON))
a.label("HW_E")
I("s_lshl_b32 s%d, s%d, 2" % (sT0, sW))
I("s_add_u32 s%d, s%d, %d" % (sT0, sT0, CNT + C_D))
I("v_mov_b32 v%d, s%d" % (vCNTW, sT0))
_n0 = len(a.ins)
for j in range(4):
    I("v_mov_b32 v%d, 0" % (56 + j))
    I("v_mov_b32 v%d, -1" % (60 + j))
I("v_mov_b32 v100, s%d" % sLFME)
I("s_mov_b64 exec, 1")
I("buffer_store_dword v56, v100, s[4:7], 0 offen sc1")
I("s_mov_b64 exec, -1")
I("v_and_b32 v101, 0x1f0, v%d" % vL16)
I("v_lshl_or_b32 v101, v20, 19, v101")
I("s_lshl_b32 s%d, s%d, 9" % (sT0, sSG))
I("s_add_u32 s%d, s%d, s%d" % (sT0, sT0, sKV))
I("buffer_store_dwordx4 v[60:63], v101, s[4:7], s%d offen sc1" % sT0)
I("v_and_b32 v102, 0x30, v%d" % vL16)
I("v_bfe_u32 v103, v0, 6, 1")
I("v_lshl_or_b32 v102, v103, 16, v102")
I("s_lshl_b32 s%d, s%d, 6" % (sT0, sSG))
I("s_add_u32 s%d, s%d, s%d" % (sT0, sT0, sZP))
I("s_mov_b64 exec, 0xff")
I("buffer_store_dwordx4 v[60:63], v102, s[4:7], s%d offen sc1" % sT0)
I("s_mov_b64 exec, -1")
I("s_lshl_b32 s%d, s%d, 2" % (sT1, sSG))
I("s_add_u32 s%d, s%d, s%d" % (sT1, sT1, sRB))
I("s_add_u32 s%d, s%d, s%d" % (sT0, sH, sTILE))
I("s_add_u32 s%d, s%d, 65536" % (sT2, sT0))
I("s_cmp_eq_u32 s%d, 63" % sT1)
I("s_cselect_b32 s%d, s%d, 0x%x" % (sT2, sT2, 0x70000000))
I("s_cmp_eq_u32 s%d, 0" % sT1)
I("s_cselect_b32 s%d, s%d, s%d" % (sT2, sT0, sT2))
I("s_add_u32 s%d, s%d, 32768" % (sT0, sT0))
I("s_add_u32 s%d, s%d, s%d" % (sT0, sT0, sHDST))
I("s_cmp_eq_u32 s%d, 0" % sHON)
I("s_cselect_b32 s%d, s%d, s%d" % (sT0, sT2, sT0))
I("s_cselect_b32 s%d, 0, -1" % sT1)
for j in range(4):
    I("v_mov_b32 v%d, s%d" % (56 + j, sT1))
I("s_mov_b32 exec_lo, 0xff0000ff")
I("s_mov_b32 exec_hi, 0xff0000ff")
for ly in range(2):
    for j in range(2):
        I("buffer_store_dwordx4 v[56:59], v%d, s[4:7], s%d offen offset:%d sc1" % (vL16, sT0, j * 1024))
    I("s_add_u32 s%d, s%d, %d" % (sT0, sT0, HLY))
I("s_mov_b64 exec, -1")
INIT = [x.text for x in a.ins[_n0:]]
del a.ins[_n0:]

vK, vV, vQ = 64, 80, 96
AB, AA = 24, 100
P1SLOTS = list(range(32, 56, 4))
al = ALoad(32, sU0, vA, 32)


def p1_frags(loads):
    fr = []
    for ks in range(32):
        for n in range(2):
            d = dict(chunk=ks // 8, off=(ks // 8) * 16384 + (ks % 8) * 2048, areg=(vWH if n == 0 else vWA),
                     mfma=(lambda w, ks=ks, n=n: mf32(vK + 16 * n, w, vA + 4 * ks, 0 if ks == 0 else None)))
            if n == 0 and loads:
                d["vm"] = (lambda ks=ks: vq.cnt_for(("a", ks)))
                d["post"] = (lambda ks=ks: al.post(ks))
            fr.append(d)
    return fr


def p1_waddr():
    I("v_xor_b32 v%d, 64, v%d" % (vWA, vWH))


def phi_addr():
    I("v_bfe_u32 v12, v%d, 4, 1" % vL16)
    I("v_lshrrev_b32 v98, 9, v%d" % vL16)
    I("v_xor_b32 v98, v98, v12")
    I("v_lshlrev_b32 v12, 9, v12")
    I("v_bfe_u32 v99, v%d, 6, 2" % vL16)
    I("v_lshl_or_b32 v12, v99, 5, v12")
    I("v_bfe_u32 v99, v%d, 8, 1" % vL16)
    I("v_lshl_or_b32 v12, v99, 4, v12")
    I("v_bfe_u32 v99, v%d, 5, 1" % vL16)
    I("v_lshl_or_b32 v12, v99, 3, v12")
    I("v_cmp_eq_u32 vcc, 1, v98")
    I("v_mov_b32 v99, 1024")
    I("v_cndmask_b32 v12, v12, v99, vcc")
    I("v_add_u32 v12, %d, v12" % PHI_IMG)


def phi_reads():
    for j in range(4):
        I("ds_read_b64_tr_b16 %s, v12 offset:%d" % (vr(56 + 2 * j, 2), j * 128))
        lq.issue("phi")


def f_stats():
    pair_red32(96, 98)
    aug_b(96, AB)
    aug_addr(13, CS)
    finish_stats(96, 97, vMR, vMR + 1)
    I("v_mul_f32 v28, 0x%x, v%d" % (f2u(L2E), vMR + 1))


def f_addr():
    phi_addr()
    I("v_bfe_u32 v29, v%d, 4, 5" % vL16)
    I("v_and_b32 v30, 2, v29")
    I("v_bfe_u32 v98, v29, 3, 1")
    I("v_or_b32 v30, v30, v98")
    I("v_lshlrev_b32 v29, 7, v29")
    I("v_lshl_or_b32 v29, v30, 5, v29")
    I("v_lshrrev_b32 v98, 9, v%d" % vL16)
    I("v_lshlrev_b32 v99, 6, v98")
    I("v_xor_b32 v30, v99, v29")
    I("v_lshlrev_b32 v99, 5, v98")
    I("v_xor_b32 v29, v99, v29")
    I("s_lshl_b32 s%d, s%d, 12" % (sT0, sW))
    I("s_add_u32 s%d, s%d, %d" % (sT0, sT0, STG_PHI))
    I("v_add_u32 v30, s%d, v30" % sT0)
    I("s_lshl_b32 s%d, s%d, 6" % (sT0, sKH))
    I("v_xor_b32 v29, s%d, v29" % sT0)
    I("s_lshl_b32 s%d, s%d, 12" % (sT0, sMH))
    I("s_add_u32 s%d, s%d, %d" % (sT0, sT0, STG_V))
    I("v_add_u32 v29, s%d, v29" % sT0)
    I("v_xor_b32 v31, 32, v30")
    I("s_lshl_b32 s%d, s%d, 5" % (sT0, sW))
    I("v_xor_b32 v106, s%d, v%d" % (sT0, vW16))
    I("v_add_u32 v106, %d, v106" % STG_PHI)
    I("s_lshl_b32 s%d, s%d, 5" % (sT0, sKH))
    I("v_xor_b32 v107, s%d, v%d" % (sT0, vW16))
    I("v_add_u32 v107, %d, v107" % STG_V)
    I("v_xor_b32 v108, 64, v107")
    I("v_lshrrev_b32 v109, 1, v%d" % vL16)
    I("v_bfe_u32 v110, v%d, 4, 4" % vL16)
    I("v_lshlrev_b32 v110, 2, v110")
    I("s_lshl_b32 s%d, s%d, 9" % (sU1, sSG))
    I("s_add_u32 s%d, s%d, s%d" % (sU1, sU1, sKV))
    I("s_lshl_b32 s%d, s%d, 6" % (sU2, sSG))
    I("s_add_u32 s%d, s%d, s%d" % (sU2, sU2, sZP))


p1_waddr()
w0 = WStream(p1_frags(False), lq, [], P1SLOTS)
if "xts" in EXP:
    ts("setup")


def init_done():
    I("s_waitcnt vmcnt(0)")
    I("v_mov_b32 v111, 1")
    I("s_mov_b64 exec, 1")
    I("ds_add_u32 v%d, v111 offset:%d" % (vCNT, C_GI))
    lq.issue()
    I("s_mov_b64 exec, -1")


L0FILL = capture(f_stats) + capture(f_addr)
assert args.glag == 8


def l0_group(g):
    if g == args.gi:
        init_done()
    if g == 0:
        w0.prologue()
        w0.asyncrf = True
    waitcnt(None, lq.cnt_for(("xr", g)))
    for i in range(8 * g, 8 * g + 8):
        waitcnt(None, lq.cnt_for(w0.tag(i)))
        w0.f[i]["mfma"](w0.wreg(i))
        w0.issue()
        if i >= 10:
            for _ in range(2):
                if L0FILL:
                    I(L0FILL.pop(0))
        if i == 56:
            lds_wait_ge(C_PH, 1, lq, t=AA)
            phi_reads()
            aug_read(13, AA, 2, C_CSA, 4, True)
        if i == 60:
            aug_a(AA, 2, two=True)
        if i == 61:
            mf32(vK, AA, AB)
        if i == 62:
            mf32(vV, AA + 2, AB)
        if g == args.initg and i == 8 * g:
            for x_ in INIT:
                I(x_.replace("v_lshl_or_b32 v101, v20, 19, v101", "v_lshrrev_b32 v103, 9, v0\nv_lshl_or_b32 v101, v103, 19, v101"))


for cbk in range(8):
    if cbk + args.x1 < 8:
        x_issue(cbk + args.x1, cbk + args.x1 + 1)
    if cbk + args.x1 == 8 and args.initg < 0:
        for x_ in INIT:
            I(x_)
        for _ in range(7):
            vq.issue("init")
    waitcnt(vq.cnt_for(("x", cbk)))
    if "xts" in EXP and cbk in (0, 3, 7):
        ts("x%d" % cbk, lq)
    for i in range(4):
        I("ds_write_b128 v%d, %s offset:%d" % (112 + (i & 1), vr(vA + 4 * (4 * cbk + i)), i * 1024))
        lq.issue()
    for u in range(4):
        I("ds_read_b128 %s, v%d" % (vr(vA + 4 * (4 * cbk + u)), 114 + u))
        lq.issue(("xr", cbk))
    if cbk > 0:
        x_stats(cbk - 1)
    if cbk == 7:
        x_stats(7)
        I("v_mov_b32 v%d, %d" % (vREL, args.q1))
        for j in range(8):
            I("v_mov_b32 v%d, v%d" % (vXP + j, 120 + j))
    if cbk >= args.glag:
        l0_group(cbk - args.glag)
ts('xdone')
for g in range(max(0, 8 - args.glag), 8):
    l0_group(g)
if args.gi == 8:
    init_done()
I("ds_write_b32 v%d, v%d" % (vCNTW, vREL))
ts("x_ready")
I("s_lshl_b32 s%d, s%d, 12" % (sU3, sRB))
I("s_lshl_b32 s%d, s%d, 9" % (sT0, sCB))
I("s_add_u32 s%d, s%d, s%d" % (sU3, sU3, sT0))
I("s_lshl_b32 s%d, s%d, 3" % (sT0, sKH))
I("s_add_u32 s%d, s%d, s%d" % (sU3, sU3, sT0))
I("s_add_u32 s%d, s%d, s%d" % (sU3, sU3, sST))
srd(8, sOUT, 2 * MB)

assert not L0FILL
I("s_branch P1_JOIN")

P1FR = p1_frags(True)
a.label("P1_L1")
vq, lq = Q("vm", 63), Q("lgkm", 15)
LEDGER.extend([(None, 0)] * HOLD)
ws_ = WStream(P1FR, lq, [], P1SLOTS).enter()
poll(112, sNEED, None if args.p1late else ws_.prologue, pp=True)
ts("start", idx=0)
stats_load(2, sW, 112)
al.issue(args.na0)
if args.p1late:
    refresh_have(lq)
    ws_.prologue()
ts("p1_a_ready")
ws_.run([(1, 1, [lambda: stats_sum(112, vSUM)]), (2, 2, capture(f_stats) + capture(f_addr)),
         (40, 1, [phi_reads, lambda: aug_read(13, AA, 2, C_CSA, 4, True, nowait=True)]), (48, 1, [lambda: aug_a(AA, 2, two=True)]),
         (53, 1, [lambda: mf32(vK, AA, AB), lambda: mf32(vV, AA + 2, AB)]), (42, 1, [lambda: chk_issue(112)]), (50, 1, [lambda: chk_test(112)])],
        quota=[(args.rel1at, args.q1)], name='p1')
assert ws_.left == 0
a.label("P1_JOIN")
ts("p1a_loop", lq)
waitcnt(None, lq.cnt_for("phi"))
PK = 112
for j in range(8):
    I("v_cvt_pk_bf16_f32 v%d, v%d, v%d" % (32 + j, vK + 2 * j, vK + 2 * j + 1))
mf32(PK, 56, 32, 0)
mf32(PK, 60, 36)
for j in range(8):
    I("v_pk_mul_f32 %s, %s, %s op_sel:[1,0] op_sel_hi:[1,1]" % (vr(vV + 2 * j, 2), vr(vMR, 2), vr(vV + 2 * j, 2)))
for j in range(8):
    I("v_cvt_pk_bf16_f32 v%d, v%d, v%d" % (40 + j, vV + 2 * j, vV + 2 * j + 1))
I("ds_write_b128 v29, %s" % vr(40))
I("ds_write_b128 v29, %s offset:16" % vr(44))
softmax(PK, 64, 80, 96, 28)
I("ds_write_b128 v30, %s" % vr(80))
I("ds_write_b128 v30, %s offset:16" % vr(84))
softmax_neg(64, 80, 96)
I("ds_write_b128 v31, %s" % vr(88))
I("ds_write_b128 v31, %s offset:16" % vr(92))
ts("p1a_softmax", lq)


def sh():
    for j in range(4):
        I("v_mov_b32 v%d, s%d" % (96 + j, sONES))


sync4(lq, 100, sh)
for ks in range(4):
    I("ds_read_b64_tr_b16 %s, v106 offset:%d" % (vr(64 + 4 * ks, 2), ks * 4096))
    I("ds_read_b64_tr_b16 %s, v106 offset:%d" % (vr(66 + 4 * ks, 2), ks * 4096 + 512))
    I("ds_read_b64_tr_b16 %s, v%d offset:%d" % (vr(PK + 4 * ks, 2), 107 + (ks >> 1), (ks & 1) * 4096))
    I("ds_read_b64_tr_b16 %s, v%d offset:%d" % (vr(PK + 2 + 4 * ks, 2), 107 + (ks >> 1), (ks & 1) * 4096 + 512))
    for _ in range(3):
        lq.issue()
    lq.issue(("kvr", ks))
for ks in range(4):
    waitcnt(None, lq.cnt_for(("kvr", ks)))
    mf16(80, 64 + 4 * ks, PK + 4 * ks, 0 if ks == 0 else None)
    mf16(84, 96, 64 + 4 * ks, 0 if ks == 0 else None)
I("v_cvt_pk_bf16_f32 v80, v80, v81")
I("v_cvt_pk_bf16_f32 v81, v82, v83")
I("v_min_u32 v80, -2, v80")
I("v_min_u32 v81, -2, v81")
I("v_min_u32 v84, -2, v84")
I("buffer_store_dwordx2 %s, v109, s[4:7], s%d offen sc1" % (vr(80, 2), sU1))
I("buffer_store_dword v84, v110, s[4:7], s%d offen sc1" % sU2)
I("s_mov_b64 exec, 1")
prog(1, lq, 85)
I("s_mov_b64 exec, -1")
credit(HOLD + 4 - args.q1, exact=True)
ts("kv_published")
fr = []
for ks in range(32):
    fr.append(dict(chunk=4 + ks // 16, off=(ks // 16) * 16384 + (ks % 8) * 2048, areg=vWA + ((ks // 8) & 1),
                   mfma=(lambda w, ks=ks: mf32(64, w, vA + 4 * ks, 0 if ks == 0 else None))))
wq = WStream(fr, lq, [], P1SLOTS).enter()
I("v_xor_b32 v%d, 0x10000, v%d" % (vWA, vWH))
I("v_xor_b32 v%d, 0x10040, v%d" % (vWA + 1, vWH))
wq.prologue()


def f():
    I("v_lshrrev_b32 v125, 9, v%d" % vL16)
    I("s_lshl_b32 s%d, s%d, 5" % (sT0, sW))
    I("s_add_u32 s%d, s%d, %d" % (sT0, sT0, ZT))
    I("v_lshrrev_b32 v117, 1, v110")
    I("v_add_u32 v117, s%d, v117" % sT0)
    I("v_bfe_u32 v118, v%d, 4, 3" % vL16)
    I("v_lshl_or_b32 v118, v118, 1, v125")
    I("v_bfe_u32 v126, v%d, 7, 2" % vL16)
    I("v_mul_u32_u24 v118, 80, v118")
    I("v_lshl_add_u32 v118, v126, 3, v118")
    I("s_mul_i32 s%d, s%d, 1280" % (sT0, sKH))
    I("s_lshl_b32 s%d, s%d, 5" % (sT2, sMH))
    I("s_add_u32 s%d, s%d, s%d" % (sT0, sT0, sT2))
    I("s_add_u32 s%d, s%d, %d" % (sT0, sT0, KVT))
    I("v_add_u32 v118, s%d, v118" % sT0)
    I("v_bfe_u32 v122, v%d, 8, 1" % vL16)
    I("v_bfe_u32 v123, v%d, 6, 1" % vL16)
    I("v_bfe_u32 v124, v%d, 7, 1" % vL16)
    I("v_bfe_u32 v119, v%d, 4, 2" % vL16)
    I("v_lshl_or_b32 v119, v123, 3, v119")
    I("v_lshl_or_b32 v119, v124, 2, v119")
    I("v_lshl_or_b32 v119, v122, 4, v119")
    I("v_mul_u32_u24 v119, 80, v119")
    I("v_add_u32 v119, %d, v119" % KVT)
    I("v_cmp_eq_u32 vcc, v122, v125")
    I("v_mov_b32 v123, %d" % ZERO)
    I("v_lshlrev_b32 v120, 6, v125")
    I("v_add_u32 v120, %d, v120" % ZT)
    I("v_cndmask_b32 v119, v123, v119, vcc")
    I("v_lshrrev_b32 v121, 2, v%d" % vL16)
    I("v_add_u32 v13, 1024, v13")


wq.run([(1, 2, capture(f)), (24, 1, [lambda: aug_read(13, AA, 1, C_CSQ, 4, True)]), (28, 1, [lambda: aug_a(AA, 1, two=True)]), (30, 1, [lambda: mf32(64, AA, AB)])])
credit(args.q2, exact=True)
PQ, SMT = 144, 192
for j in range(8):
    I("v_cvt_pk_bf16_f32 v%d, v%d, v%d" % (48 + j, 64 + 2 * j, 64 + 2 * j + 1))
mf32(PQ, 56, 48, 0)
mf32(PQ, 60, 52)

KSLOTS = list(range(128, 256, 4))


def ks_addr(ch0, vWA=vWA):
    hf = (ch0 % 8) // 4
    I("s_mul_i32 s%d, s%d, %d" % (sT0, sKH, 8192 + 64))
    I("s_add_u32 s%d, s%d, %d" % (sT0, sT0, hf * 65536))
    I("v_xor_b32 v%d, s%d, v%d" % (vWA, sT0, vWN))
    I("v_xor_b32 v%d, 64, v%d" % (vWA + 1, vWA))


def ks_stream(ch0, nsteps, al, lq_=None, vWA=vWA):
    fr = []
    for ks in range(nsteps):
        for n in (1, 0):
            d = dict(chunk=ch0 + ks // 4, off=(ks % 4) * 2048, areg=vWA + n,
                     mfma=(lambda w, ks=ks, n=n: mf32(vSEND if n else vKEEP, w, al.reg(ks), 0 if (ks == 0 and n) else None)))
            if n == 1:
                d["vm"] = (lambda ks=ks: vq.cnt_for(("a", ks)))
            else:
                d["post"] = (lambda ks=ks: al.post(ks))
            fr.append(d)
    return WStream(fr, lq if lq_ is None else lq_, [vWA, vWA + 1], KSLOTS, half0=(ch0 % 8) // 4)


al2 = ALoad(16, sU0, vKA, 16)
w2 = ks_stream(CH_P2, 16, al2).enter()
ks_addr(CH_P2)
ts("p1b_done")
GREG = [64, 68, 72, 76, 80, 84, 88, 92]
sPX2 = sHFLG
I("s_mov_b32 s%d, 0" % sPX2)
I("s_mov_b32 s%d, 0" % sNEED)
I("s_cmp_eq_u32 s%d, 0" % sLAYER)
I("s_cbranch_scc0 GATHER")
I("ds_read_b32 v%d, v%d offset:%d" % (vT, vCNT, C_GO))
I("s_waitcnt lgkmcnt(0)")
I("v_readfirstlane_b32 s%d, v%d" % (sMODE, vT))
I("s_cmp_ge_u32 s%d, 2" % sMODE)
I("s_cbranch_scc1 GATHER")
I("s_mov_b32 s%d, 2" % sPX2)
I("s_branch GWORK")
a.label("GATHER")
ts("kv_polled")
vq = Q("vm", 63)
I("s_add_u32 s%d, s%d, 4096" % (sU0, sKV))
for i in range(4):
    I("buffer_load_dword v%d, v121, s[4:7], s%d offen offset:%d sc1" % (44 + i, sZP, i * 256))
    vq.issue("z")
for k in range(8):
    I("buffer_load_dwordx4 %s, v%d, s[4:7], s%d offen offset:%d sc1" % (vr(GREG[k]), vL16, sKV if k < 4 else sU0, (k % 4) * 1024))
    vq.issue(("a", k))
I("s_bitcmp1_b32 s%d, 0" % sPX2)
I("s_cbranch_scc1 GATHER2")
a.label("GWORK")
have_issue()
softmax(PQ, 160, 96, SMT, 28)
softmax_neg(160, 96, SMT)
have_take()
w2.prologue(args.n0)
I("s_bitcmp1_b32 s%d, 1" % sPX2)
I("s_mov_b32 s%d, 1" % sPX2)
I("s_cbranch_scc0 GATHER2")
lds_wait_ge(C_GO, 2)
I("s_mov_b32 s%d, s%d" % (sMODE, sT1))
I("s_branch GATHER")
a.label("GATHER2")
I("s_mov_b32 s%d, 0x3f80" % sT1)
I("s_mov_b32 s%d, 0x3f800000" % sT2)
for j in range(8):
    I("v_mov_b32 v%d, 0" % (32 + j))
waitcnt(vq.cnt_for("z"))
I("v_max3_u32 v40, v44, v45, v46")
I("v_max_u32 v40, v40, v47")
if args.gearly:
    I("v_cmp_eq_u32 vcc, -1, v40")
    I("s_cmp_eq_u64 vcc, 0")
    I("s_cbranch_scc0 GRETRY")
I("v_add_f32 v44, v44, v45")
I("v_add_f32 v46, v46, v47")
I("v_add_f32 v44, v44, v46")
for sw in ("32", "16"):
    I("v_mov_b32 v45, v44")
    I("v_permlane%s_swap_b32 v44, v45" % sw)
    I("v_add_f32 v44, v44, v45")
I("v_cvt_pk_bf16_f32 v44, v44, v44")
for k in range(8):
    waitcnt(vq.cnt_for(("a", k)))
    I("v_max3_u32 v40, v40, v%d, v%d" % (GREG[k], GREG[k] + 1))
    I("v_max3_u32 v40, v40, v%d, v%d" % (GREG[k] + 2, GREG[k] + 3))
    for j in range(4):
        I("v_dot2c_f32_bf16 v%d, s%d, v%d" % (32 + 2 * j, sT1, GREG[k] + j))
        I("v_dot2c_f32_bf16 v%d, s%d, v%d" % (33 + 2 * j, sT2, GREG[k] + j))
I("v_cmp_eq_u32 vcc, -1, v40")
for j in range(4):
    I("v_permlane32_swap_b32 v%d, v%d" % (32 + j, 36 + j))
I("s_cmp_eq_u64 vcc, 0")
I("s_cbranch_scc0 GRETRY")
I("ds_write_b16 v117, v44")
lq.issue()
args.q3 = credit(args.q3)
I("v_pk_add_f32 %s, %s, %s" % (vr(32, 2), vr(32, 2), vr(36, 2)))
I("v_pk_add_f32 %s, %s, %s" % (vr(34, 2), vr(34, 2), vr(38, 2)))
I("v_cvt_pk_bf16_f32 v32, v32, v33")
I("v_cvt_pk_bf16_f32 v33, v34, v35")
I("ds_write_b64 v118, %s" % vr(32, 2))
ts("kv_summed")


def gretry():
    a.label("GRETRY")
    I("s_add_u32 s%d, s%d, 1" % (sNEED, sNEED))
    I("s_cmp_lt_u32 s%d, %d" % (sNEED, SPIN_G))
    I("s_cbranch_scc0 ABORT")
    if args.gdirect:
        I("s_cmp_le_u32 s%d, %d" % (sNEED, args.gdirect))
        I("s_cbranch_scc1 GATHER")
    I("buffer_load_dwordx4 %s, v%d, s[4:7], s%d offen sc1" % (vr(48), vL16, sZP))
    I("s_waitcnt vmcnt(0)")
    I("v_cmp_eq_u32 vcc, -1, v48")
    I("s_cmp_eq_u64 vcc, 0")
    I("s_cbranch_scc0 GRETRY")
    I("s_branch GATHER")


late.append(gretry)


def sh():
    I("s_lshl_b32 s%d, s%d, 15" % (sU0, sW))
    I("s_lshl_b32 s%d, s%d, 11" % (sT0, sM))
    I("s_add_u32 s%d, s%d, s%d" % (sU0, sU0, sT0))
    I("s_add_u32 s%d, s%d, s%d" % (sU0, sU0, sA))
    I("v_mov_b32 v112, 0x%x" % f2u(1e-6))
    I("v_mov_b32 v113, 0")


sync4(lq, 36, sh)
for u in range(4):
    I("ds_read_b128 %s, v119 offset:%d" % (vr(32 + 4 * u), 16 * u))
    lq.issue(("o", u))
for u in range(4):
    I("ds_read_b128 %s, v120 offset:%d" % (vr(48 + 4 * u), 16 * u))
    lq.issue(("oz", u))
for u in range(4):
    waitcnt(None, lq.cnt_for(("o", u)))
    mf32(64, 32 + 4 * u, 96 + 4 * u, 0 if u == 0 else None)
waitcnt(None, lq.cnt_for(("oz", 3)))
for j in range(16):
    I("v_dot2c_f32_bf16 v%d, v%d, v%d" % (112 + (j & 1), 48 + j, 96 + j))
I("v_add_f32 v112, v112, v113")
I("v_rcp_f32 v112, v112")
I("v_mov_b32 v113, v112")
I("v_permlane32_swap_b32 v112, v113")
for j in range(8):
    hd = j >> 2
    I("v_pk_mul_f32 %s, %s, %s op_sel:[%d,0] op_sel_hi:[%d,1]" % (vr(64 + 2 * j, 2), vr(112, 2), vr(64 + 2 * j, 2), hd, hd))
for j in range(8):
    I("v_cvt_pk_bf16_f32 v%d, v%d, v%d" % (80 + j, 64 + 2 * j, 65 + 2 * j))


def pack_keep(dst):
    for j in range(8):
        I("v_cvt_pk_bf16_f32 v%d, v%d, v%d" % (dst + j, vKEEP + 2 * j, vKEEP + 2 * j + 1))


def tile_store(pk0, pk1, soff, vo=vL16):
    stores(["buffer_store_dwordx4 %s, v%d, s[4:7], s%d offen" % (vr(pk0), vo, soff),
            "buffer_store_dwordx4 %s, v%d, s[4:7], s%d offen offset:1024" % (vr(pk1), vo, soff)])


tile_store(80, 84, sU0)
XA, XT = 64, 96
al3 = ALoad(16, sU0, vKA, 16)
w3 = ks_stream(CH_P3, 16, al3).enter()
unpack(vKEEP, vXP, 8)
poll_addr_A(64, 8)
I("s_add_u32 s%d, s%d, 1" % (sNEED, sFBASE))
I("s_add_u32 s%d, s%d, s%d" % (sU0, sA, sKOFF))
I("s_add_u32 s%d, s%d, s%d" % (sU2, sB, sTILE))
w2.prologue(args.n1)
publish(1)
ts("o_published")
poll(64, sNEED, lambda: w2.prologue(args.n2), pp=True)
ts("p2_polled")
vq = Q("vm", 63)
al2.issue(args.na0)
w2.prologue()
ks_addr(CH_P3)
w2.run([(12, 1, exchange_prep(XA)), (24, 1, stats_prep(0, 104))] + late_checks(86, 22, False), nxt=w3, name='p2', quota=[(args.nrel_at, args.qp2)])
assert w2.left == 0
ts("p2_loop")
exchange(lq, XA)
ts("p2_xchg")
pack_keep(vXP)
tile_store(vXP, vXP + 4, sU2)
out_stats(vXP, 0, 104)
poll_addr_BD(68, True)
I("s_add_u32 s%d, s%d, 2" % (sNEED, sFBASE))
I("s_add_u32 s%d, s%d, s%d" % (sU0, sB, sKOFF))
w3.prologue(args.n1)
publish(2)
ts("p2_published")
poll(68, sNEED, lambda: w3.prologue(args.n2), pp=True)
ts("p3_polled")
vq = Q("vm", 63)
stats_load(0, sRB, 112)
al3.issue(args.na0)
w3.prologue()
w3.f[1]["mfma"] = lambda w: mf32(vKEEP, w, al3.reg(0), 0)
I("s_lshl_b32 s%d, s%d, 8" % (sT2, sKH))
I("s_add_u32 s%d, s%d, %d" % (sT2, sT2, CS_W1))
I("s_cmp_eq_u32 s%d, 0" % sLAYER)
I("s_cbranch_scc0 HAVECS1")
I("s_waitcnt lgkmcnt(0)")
I("v_mov_b32 v25, 0")
I("v_mov_b32 v27, 0")
for i in range(32):
    for j in range(4):
        I("v_dot2c_f32_bf16 v%d, s%d, v%d" % (25 + 2 * (i & 1), sONES, w3.wreg(i) + j))
I("v_lshrrev_b32 v24, 2, v%d" % vL16)
I("v_add_u32 v24, s%d, v24" % sT2)
I("v_permlane32_swap_b32 v25, v27")
I("v_add_f32 v25, v25, v27")
I("ds_write_b32 v24, v25")
a.label("HAVECS1")
I("v_bfe_u32 v24, v%d, 4, 5" % vL16)
I("v_lshl_add_u32 v24, v24, 2, s%d" % sT2)
I("ds_read_b32 v25, v24")
lq.issue()
I("ds_read_b32 v27, v24 offset:128")
lq.issue("augcs")
al4 = ALoad(16, sU0, vKA, 16, voff=lambda k: 12 + k // 8)
al4.step = lambda k: 4096 if k != 8 else -4096
w4 = ks_stream(CH_P4, 16, al4).enter()
w4.swap = True
I("s_cmp_eq_u32 s%d, 0" % sRB)
I("s_cselect_b32 s%d, 0, 0x18000" % sT1)
I("s_mul_i32 s%d, s%d, %d" % (sT0, sKH, 8192 + 64))
I("s_add_u32 s%d, s%d, s%d" % (sT0, sT0, sT1))
I("v_xor_b32 v%d, s%d, v%d" % (vWA, sT0, vWN))
I("v_xor_b32 v%d, 64, v%d" % (vWA + 1, vWA))
for fr_ in w4.f:
    fr_["chunk_need"] = CH_P4 + 3


def f():
    aug_b(30, 64, 0.5)
    finish_stats(30, 31, vMR, vMR + 1)
    I("v_mul_f32 v30, v%d, v%d" % (vMR + 1, vMR + 1))
    I("v_mul_f32 v30, v30, v31")
    I("v_add_f32 v30, 0x%x, v30" % f2u(1e-5))
    I("v_rsq_f32 v30, v30")
    I("v_mul_f32 v31, v30, v%d" % (vMR + 1))
    gelu_consts(31, 12, 30)
    I("s_add_u32 s%d, s%d, s%d" % (sU2, sH, sTILE))
    I("s_add_u32 s%d, s%d, 32768" % (sU1, sU2))
    I("s_add_u32 s%d, s%d, s%d" % (sU1, sU1, sHDST))
    I("s_lshr_b32 s%d, s%d, 2" % (sT2, sCB))
    I("s_add_u32 s%d, s%d, 1" % (sT2, sT2))
    I("s_sub_u32 s%d, 32, s%d" % (sGF, sT2))
    I("s_add_u32 s%d, s%d, 32" % (sT2, sT2))
    I("s_bitcmp1_b32 s%d, 1\ns_cselect_b32 s%d, s%d, s%d" % (sCB, sT2, sGF, sT2))
    I("v_bfe_u32 v88, v%d, 4, 5" % vL16)
    I("v_add_u32 v88, s%d, v88" % sT2)
    I("v_lshrrev_b32 v89, 5, v88")
    I("v_and_b32 v88, 31, v88")
    I("v_lshlrev_b32 v88, 4, v88")
    I("v_lshl_or_b32 v88, v89, 15, v88")
    I("v_and_b32 v89, 0x200, v%d" % vL16)
    I("v_or_b32 v88, v88, v89")


def nb_issue():
    I("v_and_b32 v90, 0x70, v%d" % vL16)
    I("v_bfe_u32 v91, v%d, 7, 1" % vL16)
    I("v_lshl_or_b32 v91, v91, 3, v90")
    I("v_add_u32 v90, s%d, v91" % sNEXT)
    I("s_mov_b64 exec, 0xffff")
    I("v_add_u32 v90, s%d, v91" % sPREV)
    I("s_mov_b64 exec, -1")
    I("buffer_load_dword v91, v90, s[4:7], 0 offen sc1")
    vq.issue("nb")


def nb_check():
    D = a.newlabel("NB")
    waitcnt(vq.cnt_for("nb"))
    I("v_cmp_le_u32 vcc, s%d, v91" % sNEED)
    I("s_cmp_eq_u64 vcc, -1")
    I("s_cbranch_scc1 %s" % D)
    poll(90, sNEED)
    a.label(D)


w3.run([(19, 1, [nb_issue]), (0, 1, [lambda: stats_sum(112, 30)] + capture(lambda: pair_red32(30, 12))), (6, 2, capture(f)), (12, 1, exchange_prep(XA)),
        (4, 1, [lambda: aug_a(24, 2)]), (20, 1, [lambda: mf32(vSEND, 24, 64), lambda: mf32(vKEEP, 26, 64)])] + late_checks(86, 22),
       nxt=w4, name='p3', quota=[(args.rel3at, 10 - args.q2 - args.q3 - args.qp2)])
assert w3.left == 0
ts("p3_loop")
exchange(lq, XA, nb_check)
for x in gelu16(vKEEP, 64, 12, 30):
    I(x)
tile_store(vKEEP, vKEEP + 8, sU2, 88)
for j in (0, 1, 2, 3, 8, 9, 10, 11):
    I("v_min_u32 v%d, -2, v%d" % (vSEND + j, vKEEP + j))
I("s_cmp_eq_u32 s%d, 0" % sHON)
I("s_cselect_b32 s%d, 0x70000000, s%d" % (sU1, sU1))
I("s_mov_b64 exec, %s" % sr(sHMASK))
I("buffer_store_dwordx4 %s, v%d, s[4:7], s%d offen sc1" % (vr(vSEND), vL16, sU1))
I("buffer_store_dwordx4 %s, v%d, s[4:7], s%d offen offset:1024 sc1" % (vr(vSEND + 8), vL16, sU1))
I("s_mov_b64 exec, -1")
I("s_add_u32 s%d, s%d, s%d" % (sU0, sH, sKOFF))
I("v_bfe_u32 v64, v%d, 4, 5" % vL16)
I("v_and_b32 v65, 0x200, v%d" % vL16)
I("s_sub_u32 s%d, 31, s%d" % (sT0, sKH))
I("s_add_u32 s%d, 33, s%d" % (sT1, sKH))
for q in range(2):
    I("v_add_u32 v66, s%d, v64" % (sT0 + q))
    I("v_lshrrev_b32 v67, 5, v66")
    I("v_and_b32 v66, 31, v66")
    I("v_lshl_or_b32 v66, v66, 4, v65")
    I("v_lshl_or_b32 v66, v67, 15, v66")
    I("s_cmp_eq_u32 s%d, %d" % (sRB, 3 * q))
    I("s_cselect_b32 s%d, %d, 7" % (sT2, 2 * q))
    I("v_cmp_eq_u32 vcc, s%d, v67" % sT2)
    I("v_add_u32 v67, 0x8000, v%d" % vL16)
    I("v_cndmask_b32 v%d, v67, v66, vcc" % (12 + q))
I("v_add_u32 v13, 8192, v13")
I("s_cmp_eq_u32 s%d, 0" % sRB)
I("s_cbranch_scc0 NOSWAP")
I("v_swap_b32 v12, v13")
a.label("NOSWAP")
poll_addr_C(68)
I("s_add_u32 s%d, s%d, s%d" % (sU2, sB, sTILE))
I("s_add_u32 s%d, s%d, 3" % (sNEED, sFBASE))
I("v_bfe_u32 v28, v%d, 5, 4" % vL16)
I("v_lshlrev_b32 v28, 9, v28")
I("v_and_b32 v29, 16, v%d" % vL16)
I("v_or_b32 v28, v28, v29")
I("s_lshl_b32 s%d, s%d, 14" % (sT2, sKH))
I("s_add_u32 s%d, s%d, s%d" % (sT2, sT2, sH))
I("s_cmp_eq_u32 s%d, 0" % sRB)
I("s_cselect_b32 s%d, %d, %d" % (sT1, 30 * 16, 0))
I("s_cselect_b32 s%d, 0, %d" % (sT0, 5 * 32768 + 8192))
I("s_add_u32 s%d, s%d, s%d" % (sT2, sT2, sT1))
I("s_add_u32 s%d, s%d, s%d" % (sT2, sT2, sT0))
w4.prologue(args.n1)
publish(3, cnt=2)
ts("p3_published")


def p4_init():
    unpack(88, vXP, 8)
    for j in range(8):
        I("v_pk_add_f32 %s, %s, %s op_sel_hi:[1,0] neg_lo:[0,1] neg_hi:[0,1]" % (vr(88 + 2 * j, 2), vr(88 + 2 * j, 2), vr(vMR, 2)))


def p4_add():
    for j in range(8):
        I("v_pk_fma_f32 %s, %s, %s, %s op_sel:[1,0,0] op_sel_hi:[1,1,1]" % (vr(vKEEP + 2 * j, 2), vr(vMR, 2), vr(88 + 2 * j, 2), vr(vKEEP + 2 * j, 2)))


poll(68, sNEED, lambda: w4.prologue(args.n2), pp=True)
ts("p4_polled")
vq = Q("vm", 63)
I("s_add_u32 s%d, s%d, 1" % (sT0, sRB))
I("s_bitcmp1_b32 s%d, 1" % sT0)
I("s_cselect_b32 s%d, 0x70000000, s%d" % (sT2, sT2))
al4.issue(args.pr4)
I("buffer_load_dwordx4 %s, v28, s[4:7], s%d offen sc1" % (vr(24), sT2))
vq.issue("probe")
al4.issue(8 - args.pr4)
w4.prologue()
w4.f[1]["mfma"] = lambda w: mf32(vKEEP, w, al4.reg(0), 0)


def probe_check():
    I("s_mov_b32 s%d, 0" % sSPIN)
    waitcnt(vq.cnt_for("probe"))
    a.label("P4_PC")
    I("v_max3_u32 v24, v24, v25, v26")
    I("v_max_u32 v24, v24, v27")
    I("v_cmp_eq_u32 vcc, -1, v24")
    I("s_cmp_eq_u64 vcc, 0")
    I("s_cbranch_scc0 P4_PR")


def probe_retry():
    a.label("P4_PR")
    I("buffer_load_dwordx4 %s, v28, s[4:7], s%d offen sc1" % (vr(24), sT2))
    I("s_waitcnt vmcnt(0)")
    spin_tail("P4_PC", SPIN_G)


late.append(probe_retry)
al4.gate = {8: probe_check}
w4.run([(12, 1, exchange_prep(XA)), (24, 1, stats_prep(1, 104)), (20, 2, capture(p4_init))] + late_checks(86, 22), name='p4', quota=[(args.rel4at, args.q4)])
assert len(LEDGER) == 4 - args.q4
ts("p4_loop")
exchange(lq, XA, p4_add)
pack_keep(vX2P)
tile_store(vX2P, vX2P + 4, sU2)
out_stats(vX2P, 1, 104)
I("s_cmp_ge_u32 s%d, 14" % sM5)
I("s_cbranch_scc1 P5_SKIP")
al = ALoad(32, sU0, vA, 32)
hf = (CH_P5 % 8) // 4
for n in range(2):
    I("v_xor_b32 v%d, 0x%x, v%d" % (vWA + n, n * 64 + hf * 65536, vWN))


def p5_frag(ks, t, first):
    d = dict(chunk=CH_P5 + 4 * (t // 2) + ks // 8, off=(ks % 8) * 2048, areg=(vL16 if 'lin5' in EXP else vWA + (t & 1)), lin=('lin5' in EXP),
             mfma=(lambda w: mf32(vACC + 16 * t, w, vA + 4 * ks, 0 if ks == 0 else None)))
    if first:
        d["vm"] = (lambda: vq.cnt_for(("a", ks)))
        d["post"] = (lambda: al.post(ks))
    return d


frA = [p5_frag(ks, t, t == 0) for ks in range(32) for t in range(2)] + [p5_frag(ks, t, False) for ks in range(32) for t in range(2, 4)]
ws_ = WStream(frA, lq, [10, 11], list(range(32, 56, 4)), half0=hf).enter()
_c5 = NCRED[0] + 4 - args.q4
poll_addr_BD(58, False)
I("s_add_u32 s%d, s%d, 4" % (sNEED, sFBASE))
I("s_lshl_b32 s%d, s%d, 15" % (sU0, sW))
I("s_add_u32 s%d, s%d, s%d" % (sU0, sU0, sB))
I("s_mul_i32 s%d, s%d, %d" % (sU2, sW, CRB))
I("s_lshl_b32 s%d, s%d, 12" % (sT0, sM5))
I("s_add_u32 s%d, s%d, s%d" % (sU2, sU2, sT0))
I("s_add_u32 s%d, s%d, s%d" % (sU2, sU2, sC))
I("s_add_u32 s%d, s%d, %d" % (sU1, sU2, CRB // 2))
publish(4)
ts("p4_published")
poll(58, sNEED, ws_.prologue, pp=True)
ts("p5_polled")
vq = Q("vm", 63)
stats_load(1, sW, vA + 112)
al.issue(args.na0)


def flag_store(k, t):
    I("s_add_u32 s%d, s%d, %d" % (sT0, sFBASE, k))
    I("v_mov_b32 v%d, s%d" % (t, sT0))
    I("v_mov_b32 v%d, 0" % (t + 1))
    I("s_mov_b64 exec, 1")
    stores(["buffer_store_dword v%d, v%d, s[4:7], s%d offen" % (t, t + 1, sLFME)])
    I("s_mov_b64 exec, -1")


def p6_setup():
    poll_addr_A(56, 7)
    I("s_add_u32 s%d, s%d, 5" % (sNEED, sFBASE))
    I("s_mul_i32 s%d, s%d, %d" % (sU0, sRB, CRB))
    I("s_mul_i32 s%d, s%d, %d" % (sT0, sKH, CRB // 4))
    I("s_add_u32 s%d, s%d, s%d" % (sU0, sU0, sT0))
    I("s_add_u32 s%d, s%d, s%d" % (sU0, sU0, sC))


def h2st(t):
    l_ = ["buffer_store_dwordx4 %s, v%d, s[4:7], s%d offen offset:%d" % (vr(vACC + 16 * t + 8 * s_), vL16, sU2 if t < 2 else sU1, (t & 1) * 2048 + s_ * 1024) for s_ in range(2)]
    if "h2plain" in EXP:
        stores(l_)
    elif "h2l1" in EXP:
        stores(l_, True)
    else:
        for x_ in l_:
            I(x_ + " sc1")


def f():
    pair_red32(56, 58)
    aug_b(56, 60)
    aug_addr(13, CS_W3)
    finish_stats(56, 57, 58, 59)
    gelu_consts(59, 14, 12)


def mid():
    ts("p5_passA")
    for t in range(2):
        for x in gelu16(vACC + 16 * t, 96, 14, 12):
            I(x)
        h2st(t)
    if ws_.limit == 64:
        ws_.limit = 1 << 30
        refresh_have(lq)
        ws_.rf = None
        while ws_.issued < 64 + ws_.R:
            ws_.issue()
    I("v_add_u32 v13, 512, v13")
    ts("p5_geluA")


def flag5():
    I("s_waitcnt vmcnt(0)")
    flag_store(5, 58)


al6 = ALoad(56, sU0, vKA, 16)
al6.step = lambda k: 4096 if k != 28 else 4096 + CRB // 4
w6 = ks_stream(CH_P6, 56, al6).enter()
EARLY6 = []
if args.w6b:
    for fr_ in w6.f[:args.w6b]:
        fr_["areg"] += 60
    w6.aregs = [70, 71]
    EARLY6 = [(66, 4, capture(lambda: ks_addr(CH_P6, 70)))] + [(128 - 2 * args.w6b + 2 * j + 1, 1, [w6.issue]) for j in range(args.w6b)]
if args.q4 < 4:
    ws_.limit = 64
ws_.run(EARLY6 + [(1, 1, [lambda: stats_sum(vA + 112, 56)]), (4, 1, capture(f)),
         (48, 1, [lambda: aug_read(13, 112, 2, C_CS3, 2)]), (54, 1, [lambda: aug_a(112, 2)]),
         (59, 1, [lambda: mf32(vACC, 112, 60), lambda: mf32(vACC + 16, 114, 60)]), (63, 1, [mid]),
         (72, 1, capture(p6_setup)), (64 + args.f5at, 1, [flag5]),
         (108, 1, [lambda: aug_read(13, 64, 2, C_CS3 + 4, 2)]), (114, 1, [lambda: aug_a(64, 2)]),
         (119, 1, [lambda: mf32(vACC + 32, 64, 60), lambda: mf32(vACC + 48, 66, 60)]),
         (64 + args.pl5at, 1, ["buffer_load_dword v57, v56, s[4:7], 0 offen sc1"])],
        quota=[(args.rel5at, 12 - args.q4)], name='p5')
credit(ws_.left, exact=True)
ts("p5_loop")
if args.w6b:
    I("v_mov_b32 v10, v70")
    I("v_mov_b32 v11, v71")
    w6.aregs = [10, 11]
    credit(4, back=3)
else:
    ks_addr(CH_P6)
I("s_waitcnt vmcnt(0)")
I("v_cmp_le_u32 vcc, s%d, v57" % sNEED)
I("s_cmp_eq_u64 vcc, -1")
I("s_cbranch_scc1 P6_P")
poll(56, sNEED)
a.label("P6_P")
vq = Q("vm", 63)
al6.issue(args.a6a)
for t in range(2, 4):
    gl = gelu16(vACC + 16 * t, 32, 14, 12)
    for i in range(40):
        I(gl[2 * i])
        I(gl[2 * i + 1])
        if i % args.w6e == args.w6e - 1 and w6.issued < min(32, args.w6b + args.w6t * (t - 1)):
            w6.issue()
            credit(4 - (NCRED[0] - _c5 - 8), back=3)
        if i % 4 == 1 and al6.k < (8 if t == 2 else 12):
            al6.issue(1)
    h2st(t)
    vq.issue()
    vq.issue("h3")
NA6 = al6.k
w6.prologue()
ts("p5_gelu")
I("s_branch P6_START")
a.label("P5_SKIP")
publish(4)
lqs = Q("lgkm", 15)
release(lqs, 12 - args.q4)
ks_addr(CH_P6)
w6s = ks_stream(CH_P6, 56, al6, lq_=lqs)
w6s.prologue()
I("s_waitcnt lgkmcnt(0)")
if NCRED[0] - _c5 - 8:
    release(lqs, NCRED[0] - _c5 - 8)
assert w6s.half == w6.half
p6_setup()
poll(56, sNEED, nap=args.nap)
_vq = vq
vq = Q("vm", 63)
al6s = ALoad(56, sU0, vKA, 16)
al6s.step = al6.step
al6s.issue(NA6)
I("s_waitcnt vmcnt(0)")
vq = _vq
a.label("P6_START")
have_issue()
I("v_mov_b32 v12, v56")
unpack(vKEEP, vXP, 8)
unpack(vSEND, vX2P, 8)
for j in range(8):
    I("v_pk_add_f32 %s, %s, %s" % (vr(vKEEP + 2 * j, 2), vr(vKEEP + 2 * j, 2), vr(vSEND + 2 * j, 2)))
I("s_add_u32 s%d, s%d, s%d" % (sU2, sA, sTILE))
I("s_add_u32 s%d, s%d, 6" % (sNEED, sFBASE))
have_take()
credit(12 - (NCRED[0] - _c5), exact=True)


def flag6():
    waitcnt(vq.cnt_for("h3"))
    flag_store(6, 24)
    vq.issue()


def poll6_issue():
    I("buffer_load_dword v13, v12, s[4:7], 0 offen sc1")
    vq.issue("pl6")


def poll6_issue2():
    I("buffer_load_dword v26, v12, s[4:7], 0 offen sc1")
    vq.issue("pl6b")


def poll6_check():
    D = a.newlabel("P6G")
    waitcnt(vq.cnt_for("pl6"))
    I("v_cmp_le_u32 vcc, s%d, v13" % sNEED)
    I("s_cmp_eq_u64 vcc, -1")
    I("s_cbranch_scc1 %s" % D)
    I("s_waitcnt vmcnt(%d)" % (vq.n - vq.tags["pl6b"]))
    I("v_cmp_le_u32 vcc, s%d, v26" % sNEED)
    I("s_cmp_eq_u64 vcc, -1")
    I("s_cbranch_scc1 %s" % D)
    poll(12, sNEED)
    a.label(D)


al6.gate = {args.p6k: poll6_issue, args.p6k2: poll6_issue2, 28: poll6_check}
if 'nochk' in EXP:
    al6.gate = {}
if 'noneed6' in EXP:
    w6.doneed = False
w6.run([(98, 1, exchange_prep(XT)), (100, 1, stats_prep(2, 120)), (args.f6k, 1, [flag6]), (84, 1, [lambda: chk_issue(28)]), (90, 1, [lambda: chk_test(28)])], quota=[(0, 2), (args.rel6at, 8 - HOLD)], name='p6')
assert w6.left == 0 and len(LEDGER) == HOLD and NCRED[0] == 40, (w6.left, len(LEDGER), NCRED[0])
ts("p6_loop")
exchange(lq, XT)
pack_keep(vXP)
I("s_cmp_eq_u32 s%d, %d" % (sLAYER, args.layers - 1))
I("s_cbranch_scc1 FINAL")
tile_store(vXP, vXP + 4, sU2)
out_stats(vXP, 2, 120)
poll_addr_BD(112, False)
I("s_lshl_b32 s%d, s%d, 15" % (sU0, sW))
I("s_add_u32 s%d, s%d, s%d" % (sU0, sU0, sA))
I("s_mov_b32 s%d, s%d" % (sB, sA))
I("s_add_u32 s%d, s%d, %d" % (sA, sA, HLY))
I("s_mov_b32 s%d, 7" % sNEED)
I("s_mov_b32 s%d, %d" % (sCBASE, CH_N))
I("s_sub_i32 s%d, s%d, %d" % (sHAVE, sHAVE, CH_N))
I("s_add_u32 s%d, s%d, %d" % (sH, sH, HLY))
I("s_add_u32 s%d, s%d, %d" % (sKV, sKV, 64 * 8192))
I("s_add_u32 s%d, s%d, %d" % (sZP, sZP, 64 * 1024))
p1_waddr()
refresh_have(lq)
publish(7)
ts("p6_published")
I("s_mov_b32 s%d, 1" % sLAYER)
I("s_mov_b32 s%d, 8" % sFBASE)
I("s_branch P1_L1")
a.label("FINAL")
I("v_bfe_u32 v64, v%d, 4, 5" % vL16)
I("v_lshlrev_b32 v64, 10, v64")
I("v_lshrrev_b32 v65, 9, v%d" % vL16)
I("v_lshl_or_b32 v64, v65, 4, v64")
for s_ in range(2):
    I("buffer_store_dwordx4 %s, v64, s[8:11], s%d offen offset:%d%s" % (vr(vXP + 4 * s_), sROWOFF, s_ * 32, " sc1" if "outsc1" in EXP else " nt" if "outnt" in EXP else ""))
if TS:
    I("s_waitcnt vmcnt(0)")
    ts("end", idx=tsn[0] - 1)
    I("s_memrealtime %s" % sr(sTSP))
    I("s_waitcnt lgkmcnt(0)")
    I("v_writelane_b32 v%d, s%d, 63" % (vTS, sTSP))
    I("s_lshl_b32 s%d, s2, 2" % sT0)
    I("s_add_u32 s%d, s%d, s%d" % (sT0, sT0, sW))
    I("s_lshl_b32 s%d, s%d, 8" % (sT0, sT0))
    I("s_add_u32 s%d, s%d, %d" % (sT0, sT0, WS_TS))
    I("v_lshrrev_b32 v81, 2, v%d" % vL16)
    I("buffer_store_dword v%d, v81, s[4:7], s%d offen" % (vTS, sT0))
    if args.dbgts:
        I("s_cmp_eq_u32 s2, 40")
        I("s_cbranch_scc0 DONE")
        I("s_cmp_eq_u32 s%d, 0" % sW)
        I("s_cbranch_scc0 DONE")
        srd(12, sDBG, 256)
        I("v_readlane_b32 s%d, v%d, 0" % (sT1, vTS))
        I("v_mov_b32 v82, 0")
        for k, ln in enumerate(args.dbgts.split(",")):
            I("v_readlane_b32 s%d, v%d, %s" % (sT0, vTS, ln))
            I("s_nop 3")
            if ln == "63":
                I("v_readlane_b32 s%d, v%d, 31" % (sT1, vTS))
                I("s_nop 3")
            I("s_sub_u32 s%d, s%d, s%d" % (sT0, sT0, sT1))
            I("v_writelane_b32 v82, s%d, %d" % (sT0, k))
        I("buffer_store_dword v82, v81, s[12:15], 0 offen")
if "pad" in EXP:
    if "padwb" in EXP:
        I("s_waitcnt vmcnt(0)")
        I("buffer_wbl2 sc1")
        I("s_waitcnt vmcnt(0)")
    a.label("PADL")
    I("s_memrealtime s[90:91]")
    I("s_waitcnt lgkmcnt(0)")
    I("s_sub_u32 s90, s90, s100")
    if args.mile:
        I("s_sub_u32 s90, s90, s92")
        I("s_add_u32 s90, s90, s100")
    I("s_cmp_lt_u32 s90, %d" % (15000 if "pad15" in EXP else 9000))
    I("s_cbranch_scc1 PADL")
a.label("ABORT")
a.label("DONE")
I("s_endpgm")

a.label("W_WAIT")
I("s_mov_b32 s%d, 0" % sSPIN)
a.label("W_WAIT_L")
I("ds_read_b64 %s, v%d offset:%d" % (vr(vT, 2), vCNT, C_HV))
I("s_waitcnt lgkmcnt(0)")
I("v_min_u32 v%d, v%d, v%d\nv_readfirstlane_b32 s%d, v%d" % (vT, vT, vT + 1, sHAVE, vT))
I("s_sub_i32 s%d, s%d, s%d" % (sHAVE, sHAVE, sCBASE))
I("s_cmp_gt_i32 s%d, s%d" % (sHAVE, sWNEED))
I("s_cbranch_scc1 W_WAIT_D")
I("s_sleep 1")
I("s_add_u32 s%d, s%d, 1" % (sSPIN, sSPIN))
I("s_cmp_lt_u32 s%d, %d" % (sSPIN, SPIN_L))
I("s_cbranch_scc1 W_WAIT_L")
I("s_endpgm")
a.label("W_WAIT_D")
I("s_setpc_b64 %s" % sr(sRET))
for S, c, B in stubs:
    a.label(S)
    I("s_mov_b32 s%d, %d" % (sWNEED, c))
    I("s_call_b64 %s, W_WAIT" % sr(sRET))
    I("s_branch %s" % B)
for fn in late:
    fn()
for F, lst, E in slowst:
    a.label(F)
    for s in lst:
        I(s + " sc1")
    I("s_branch %s" % E)

a.label("HELPERS")
LAG = args.lag
sPR, sRET2, sRET3, sEND, sHEND, sQ0, sQ1 = 76, 78, 80, 82, 83, 71, 72
I("s_and_b32 s%d, s%d, 1" % (sLW, sW))
I("s_bfe_u32 s%d, s%d, 0x10001" % (sPR, sW))
I("v_bfe_u32 v22, v8, 1, 2")
I("v_and_b32 v23, 2, v16")
I("v_xor_b32 v22, v22, v23")
I("v_lshrrev_b32 v23, 1, v22")
I("v_and_b32 v22, 1, v22")
I("v_lshlrev_b32 v22, 5, v22")
I("v_and_b32 v24, 1, v8")
I("v_lshl_or_b32 v22, v24, 4, v22")
I("v_mul_u32_u24 v25, 3072, v16")
I("v_add_u32 v25, v25, v22")
I("v_lshl_add_u32 v20, v23, 10, v25")
I("v_xor_b32 v21, 32, v20")
I("v_mul_u32_u24 v26, %d, v23" % (128 * 3072))
I("v_add_u32 v26, v26, v25")
I("v_xor_b32 v27, 32, v26")
I("s_mul_i32 s%d, s%d, %d" % (sT0, sLW, 64 * 3072))
I("s_lshl_b32 s%d, s%d, 6" % (sQ1, sM))
I("s_add_u32 s%d, s%d, s%d" % (sQ1, sQ1, sT0))
I("s_mul_i32 s%d, s%d, %d" % (sT0, sPR, 128 * 3072))
I("s_add_u32 s%d, s%d, s%d" % (sQ1, sQ1, sT0))
I("s_add_u32 s%d, s%d, s%d" % (sQ1, sQ1, sT0))
I("s_mul_i32 s%d, s%d, %d" % (sQ0, sW, 32 * 3072))
I("s_lshl_b32 s%d, s%d, 6" % (sT0, sM))
I("s_add_u32 s%d, s%d, s%d" % (sQ0, sQ0, sT0))
I("s_add_u32 s%d, s%d, %d" % (sQ0, sQ0, (1024 - 128 * 3072) & 0xffffffff))
I("s_mov_b32 s14, %d" % (512 * 3072))
I("s_mov_b32 s15, 0x20000")
I("s_waitcnt lgkmcnt(0)")
ws_shift()
I("s_mov_b32 s12, s%d" % sWQKV)
if TS and "hts" in EXP:
    I("s_mov_b32 s97, s98")
    I("v_mov_b32 v255, 0")
hts("karg")
I("s_and_b32 s13, s%d, 0xffff" % (sWQKV + 1))
if "warm" in EXP:
    for k, p in enumerate((sWQKV, sX, sWPHI, sDBG, sWO)):
        I("s_load_dword s%d, %s, 0" % (60 + k, sr(p)))
    I("s_add_u32 s66, s%d, %d" % (sWSP, WS_KVP))
    I("s_addc_u32 s67, s%d, 0" % (sWSP + 1))
    I("s_load_dword s65, s[66:67], 0")
if "scode" in EXP:
    I("s_lshr_b32 s%d, s2, 3" % sT0)
    I("s_lshl_b32 s%d, s%d, 2" % (sT0, sT0))
    I("s_add_u32 s%d, s%d, s%d" % (sT0, sT0, sW))
    I("s_sub_u32 s%d, s%d, 4" % (sT0, sT0))
    I("s_mul_i32 s%d, s%d, 384" % (sT0, sT0))
    I("s_min_u32 s%d, s%d, CODE_END-PCREF-384" % (sT0, sT0))
    I("s_add_u32 s58, s58, s%d" % sT0)
    I("s_addc_u32 s59, s59, 0")
    for j in range(6):
        I("s_load_dword s68, s[58:59], %d" % (j * 64))


def res_addr(c):
    I("s_lshl_b32 s%d, s%d, 1" % (sSOFF, sPR))
    I("s_add_u32 s%d, s%d, s%d" % (sSOFF, sSOFF, sLW))
    I("s_lshl_b32 s%d, s%d, 13" % (sSOFF, sSOFF))
    I("s_add_u32 s%d, s%d, %d" % (sSOFF, sSOFF, (c % 8) * 16384))


def q_loads(r):
    res_addr(4)
    I("s_mov_b32 s73, m0")
    for e in range(8):
        I("s_add_u32 m0, s%d, %d" % (sSOFF, e * 1024))
        I("s_nop 0")
        I("buffer_load_dwordx4 v%d, s[12:15], s%d offen lds" % (26 + (e & 1), sQ1))
        I("s_add_u32 s%d, s%d, %d" % (sQ1, sQ1, 8 * 3072))
    I("s_mov_b32 m0, s73")


def kv_loads(c):
    I("s_mov_b32 s73, m0")
    I("s_lshl_b32 s74, s%d, 12" % sW)
    for e in range(4):
        I("s_add_u32 m0, s74, %d" % ((c * 16384 + e * 1024 - 16384) & 0xffffffff))
        I("s_nop 0")
        I("buffer_load_dwordx4 v%d, s[12:15], s%d offen lds" % (20 + (e & 1), sQ0))
        I("s_add_u32 s%d, s%d, %d" % (sQ0, sQ0, (8 if e < 3 else 104) * 3072))
    I("s_mov_b32 m0, s73")


I("s_barrier")
if "nomt0" not in EXP:
    I("s_lshl_b32 s%d, s2, 2" % sT1)
    I("s_add_u32 s%d, s%d, s%d" % (sT1, sT1, sW))
    I("s_mul_i32 s%d, s%d, 1536" % (sT1, sT1))
    I("s_sub_u32 s%d, s%d, %d" % (sT1, sT1, 4 * 1536))
    I("v_lshlrev_b32 v28, 7, v8")
    I("s_mov_b64 exec, 0xfff")
    I("buffer_load_dword v6, v28, s[12:15], s%d offen" % sT1)
    I("s_mov_b64 exec, -1")
    if "mtw" in EXP:
        I("s_waitcnt vmcnt(0)")
if "touch0" in EXP:
    I("s_lshr_b32 s%d, s2, 3" % sT0)
    I("s_lshl_b32 s%d, s%d, 2" % (sT1, sT0))
    I("s_add_u32 s%d, s%d, s%d" % (sT1, sT1, sW))
    I("s_mul_i32 s%d, s%d, %d" % (sT1, sT1, 4 * 3072))
    I("s_add_u32 s%d, s%d, %d" % (sT1, sT1, (1024 - 16 * 3072) & 0xffffffff))
    I("v_lshrrev_b32 v28, 4, v8")
    I("v_mul_u32_u24 v28, 3072, v28")
    I("v_and_b32 v29, 15, v8")
    I("v_lshl_add_u32 v28, v29, 7, v28")
    I("buffer_load_dword v6, v28, s[12:15], s%d offen" % sT1)
    I("s_lshl_b32 s%d, s%d, 1" % (sT1, sT0))
    I("s_add_u32 s%d, s%d, s%d" % (sT1, sT1, sLW))
    I("s_mul_i32 s%d, s%d, %d" % (sT1, sT1, 8 * 3072))
    I("v_mul_u32_u24 v28, 3072, v16")
    I("v_lshl_add_u32 v28, v17, 7, v28")
    I("s_cmp_eq_u32 s%d, 0" % sPR)
    I("s_cbranch_scc0 NOQT")
    I("buffer_load_dword v6, v28, s[12:15], s%d offen" % sT1)
    a.label("NOQT")
I("s_cmp_eq_u32 s%d, 7" % sW)
I("s_cbranch_scc0 NOPHI")
srd(8, sWPHI, 32 * 512)
I("s_lshl_b32 s%d, s%d, 10" % (sT0, sM))
I("s_mov_b32 m0, %d" % PHI_IMG)
I("s_nop 0")
I("buffer_load_dwordx4 v%d, s[8:11], s%d offen lds" % (vL16, sT0))
srd(4, sWSP, WS_SIZE)
I("v_mov_b32 v150, %d" % WS_EP)
I("buffer_load_dwordx2 v[152:153], v150, s[4:7], 0 offen sc1")
a.label("NOPHI")
def t2_touch():
    I("s_lshr_b32 s%d, s2, 3" % sT0)
    I("s_lshl_b32 s%d, s%d, 2" % (sT0, sT0))
    I("s_add_u32 s%d, s%d, s%d" % (sT0, sT0, sW))
    I("s_mul_i32 s%d, s%d, %d" % (sT0, sT0, 2 * 3072))
    I("s_add_u32 s%d, s%d, %d" % (sT0, sT0, 248 * 3072 + 1024))
    I("v_lshrrev_b32 v28, 4, v8")
    I("v_mul_u32_u24 v28, 3072, v28")
    I("v_and_b32 v29, 15, v8")
    I("v_lshl_add_u32 v28, v29, 7, v28")
    I("s_mov_b32 exec_hi, 0")
    I("buffer_load_dword v6, v28, s[12:15], s%d offen" % sT0)
    I("s_mov_b64 exec, -1")


if "t2a" in EXP:
    t2_touch()
for c in range(args.kla):
    kv_loads(c)
    if "t2b" in EXP and c == 0:
        t2_touch()
if "m0" in EXP or "m0s" in EXP:
    for w_, lst in (((4, [sW3]), (5, [sW4]), (6, [sWO, sW1]), (7, [sW2])) if "m0" in EXP else ((4, [sWO]), (5, [sW1]), (6, [sW2]))):
        S = a.newlabel("M0")
        I("s_cmp_eq_u32 s%d, %d" % (sW, w_))
        I("s_cbranch_scc0 %s" % S)
        for p in lst:
            big = p in (sW3, sW4)
            srd(8, p, 1792 * 1024 if big else 512 * 1024)
            I("s_mul_i32 s%d, s2, %d" % (sT0, 7168 if big else 2048))
            I("v_lshlrev_b32 v28, 7, v8")
            I("s_mov_b32 exec_lo, 0x%x" % (0xffffffff if big else 0xffff))
            I("s_mov_b32 exec_hi, 0x%x" % (0xffffff if big else 0))
            I("buffer_load_dword v6, v28, s[8:11], s%d offen" % sT0)
            I("s_mov_b64 exec, -1")
        a.label(S)
common_setup()
hts("iss")
I("v_mov_b32 v17, v22")
I("v_mov_b32 v18, v23")
I("v_lshlrev_b32 v19, 2, v8")
I("v_add_u32 v19, %d, v19" % CS)
I("s_lshl_b32 s%d, s%d, 2" % (sT0, sW))
I("s_add_u32 s%d, s%d, %d" % (sT1, sT0, CNT + C_H - 16))
I("v_mov_b32 v1, s%d" % sT1)
I("s_add_u32 s%d, s%d, %d" % (sT1, sT0, CNT + C_F - 16))
I("v_mov_b32 v%d, s%d" % (vCNTW, sT1))
I("s_lshl_b32 s%d, s%d, 5" % (sT0, sLW))
I("v_xor_b32 v15, s%d, v22" % sT0)
I("v_lshlrev_b32 v7, 7, v8")
I("s_mov_b32 s%d, %d" % (sFREE, 8 - HOLD))
I("s_mov_b32 s%d, 0" % sCBASE)
I("s_mov_b32 s77, 0")
I("s_setprio 3")
I("s_cmp_eq_u32 s%d, 7" % sW)
I("s_cbranch_scc1 INITW")
I("s_cmp_eq_u32 s%d, 6" % sW)
I("s_cbranch_scc1 TASK6")


def pub(sreg):
    if sreg != sPUB:
        I("s_mov_b32 s%d, s%d" % (sPUB, sreg))
    I("s_call_b64 %s, PUB" % sr(sRET3))


def w3_voff():
    srd(12, sW3, 512 * 3584)
    I("v_mul_u32_u24 v20, 3584, v16")
    I("v_lshl_add_u32 v20, v18, 6, v20")
    I("v_add_u32 v20, v20, v17")
    I("v_xor_b32 v21, 32, v20")
    I("s_lshl_b32 s%d, s%d, 8" % (sQ0, sM5))
    I("s_lshl_b32 s%d, s%d, 7" % (sT1, sLW))
    I("s_add_u32 s%d, s%d, s%d" % (sQ0, sQ0, sT1))
    I("s_mul_i32 s%d, s%d, %d" % (sT1, sPR, 64 * 3584))
    I("s_add_u32 s%d, s%d, s%d" % (sQ0, sQ0, sT1))


def group_call(name, end, hend, addlw=False):
    I("s_add_u32 s%d, s%d, %d" % (sEND, sCBASE, end))
    if addlw:
        I("s_add_u32 s%d, s%d, s%d" % (sEND, sEND, sLW))
    I("s_mov_b32 s%d, %d" % (sHEND, hend))
    I("s_call_b64 %s, %s" % (sr(sRET2), name))


I("s_lshl_b32 s%d, s%d, 10" % (sT0, sLW))
I("s_mov_b32 m0, s%d" % sT0)
I("s_branch LD_FIRST")


def ld_phase(ptr, nbytes, stride, X, col_expr, nch, jump=None, skip=0):
    I("s_mov_b32 s12, s%d" % ptr)
    I("s_and_b32 s13, s%d, 0xffff" % (ptr + 1))
    I("s_mov_b32 s14, %d" % nbytes)
    I("s_mov_b32 s%d, %d" % (sSTR, stride))
    I("s_mov_b32 s%d, %d" % (sXX, X))
    I("s_mov_b32 s%d, %d" % (sNCH, nch))
    d = 16 * stride
    I("s_mov_b32 s%d, %d" % (sD1, d))
    I("s_mov_b32 s%d, %d" % (sJ1, (d if jump is None else d + jump - 64 * stride) & 0xffffffff))
    I("s_mov_b32 s%d, %d" % (sJ2, (d if jump is None else d - jump + skip) & 0xffffffff))
    col_expr()
    I("s_call_b64 %s, LD_RUN" % sr(sRET))


def colm(sh, add):
    def f():
        I("s_lshl_b32 s%d, s%d, %d" % (sCOL, sM, sh))
        if add:
            I("s_add_u32 s%d, s%d, %d" % (sCOL, sCOL, add))
    return f


def colcb():
    I("s_lshl_b32 s%d, s%d, 7" % (sCOL, sCB))


def colcb2():
    colcb()
    I("s_add_u32 s%d, s%d, %d" % (sCOL, sCOL, 64 * 1024))


def ld_flush():
    for d in range(LAG, 0, -1):
        I("s_waitcnt vmcnt(%d)" % (8 * (d - 1)))
        I("s_sub_i32 s%d, s%d, %d" % (sT0, sISS, d - 1))
        I("s_max_i32 s%d, s%d, s%d" % (sPUB, sPUB, sT0))
        pub(sPUB)


a.label("LD_LAYER")
ld_flush()
a.label("LD_FIRST")
I("s_call_b64 %s, RK" % sr(sRET2))
group_call("RQ", 6, CH_P5)
I("s_setprio %d" % args.lprio)
I("s_mov_b32 s%d, s%d" % (sISS, sPUB))
I("s_add_u32 m0, m0, %d" % (6 * 16384))
if args.l3at == 0:
    I("s_call_b64 %s, L3" % sr(sRET2))
ld_phase(sWO, 512 * 1024, 1024, 64, colcb, 4, jump=256 * 1024)
if args.l3at == 1:
    I("s_call_b64 %s, L3" % sr(sRET2))
    ld_flush0 = True
ld_phase(sW1, 512 * 1024, 1024, 64, colcb, 4, jump=256 * 1024)
ld_phase(sW2, 512 * 1024, 1024, 64, colcb, 4, jump=256 * 1024)
ld_flush()
if args.l3at == 2:
    I("s_call_b64 %s, L3" % sr(sRET2))
group_call("R3", CH_P6, 0x100000)
I("s_mov_b32 s%d, s%d" % (sISS, sPUB))
ld_phase(sW4, 1792 * 1024, 1024, 64, colcb, 7, jump=896 * 1024, skip=64 * 1024)
if "half6" in EXP:
    ld_phase(sW4, 1792 * 1024, 1024, 64, colcb2, 5, jump=896 * 1024, skip=64 * 1024)
    ld_flush()
    I("s_add_u32 s%d, s%d, 2" % (sISS, sISS))
    pub(sISS)
    I("s_add_u32 m0, m0, 32768")
    I("s_and_b32 m0, m0, 0x1ffff")
else:
    ld_phase(sW4, 1792 * 1024, 1024, 64, colcb2, 7, jump=896 * 1024, skip=64 * 1024)
I("s_add_u32 s%d, s%d, 1" % (sLAYER, sLAYER))
I("s_add_u32 s%d, s%d, %d" % (sCBASE, sCBASE, CH_N))
I("s_cmp_lt_u32 s%d, %d" % (sLAYER, args.layers))
I("s_cbranch_scc1 LD_LAYER")
ld_flush()
I("s_waitcnt lgkmcnt(0)")
I("s_endpgm")

sG = 77
a.label("PUB")
I("v_mov_b32 v%d, s%d" % (vT, sPUB))
I("ds_write_b32 v%d, v%d" % (vCNTW, vT))
I("v_xor_b32 v29, 8, v%d" % vCNTW)
I("v_and_b32 v30, -9, v%d" % vCNTW)
I("s_cmp_le_u32 s%d, s%d" % (sPUB, sG))
I("s_cbranch_scc1 PUB_F")
I("ds_read_b32 v28, v29")
I("s_waitcnt lgkmcnt(0)")
I("v_readfirstlane_b32 s%d, v28" % sG)
I("v_min_u32 v%d, v%d, v28" % (vT, vT))
a.label("PUB_F")
I("s_mov_b64 exec, 1")
I("ds_max_u32 v30, v%d offset:%d" % (vT, C_HV - C_F))
I("s_mov_b64 exec, -1")
I("s_setpc_b64 %s" % sr(sRET3))


def res_fill(name, c, r, wait, last, pre=None, prewait=None, after_free=None):
    I("s_add_u32 s%d, s%d, s%d" % (sISS, sCBASE, sPR))
    I("s_add_u32 s%d, s%d, %d" % (sISS, sISS, c))
    S = a.newlabel("RF")
    I("s_cmp_gt_u32 s%d, s%d" % (sFREE, sISS))
    I("s_cbranch_scc1 %s" % S)
    I("s_call_b64 %s, LD_FREE" % sr(sRET))
    a.label(S)
    if after_free:
        after_free()
    res_addr(c)
    I("v_add_u32 v10, s%d, v%d" % (sSOFF, vL16))
    I("s_waitcnt vmcnt(%d)" % wait)
    if name == "RQ":
        hts("data%d" % c)
    if pre and args.b1first:
        pre()
    if name == "RQ":
        I("s_cmp_eq_u32 s%d, 0" % sLAYER)
        I("s_cbranch_scc1 RQ_NQ")
    for e in range(8):
        I("ds_write_b128 v10, %s offset:%d" % (vr(32 + 32 * r + 4 * e), e * 1024))
    if name == "RQ":
        a.label("RQ_NQ")
    if last:
        pub(sEND)
    else:
        I("s_add_u32 s%d, s%d, 2" % (sPUB, sISS))
        pub(sPUB)
    if name == "RQ":
        hts("pub%d" % c)
    if pre and not args.b1first:
        pre()


def res_cs(name, c, vmap, r, first, one, last, out, addr=None, noh=False, quarter=None, keep=False):
    R0 = 32 + 32 * r
    addr() if addr else res_addr(c)
    I("v_add_u32 v11, s%d, v%d" % (sSOFF, vmap))
    I("v_xor_b32 v12, 64, v11")
    for e in range(8):
        o_ = (e >> 1) * 2048 if quarter is None else (quarter + (e >> 2)) * 16384 + ((e >> 1) & 1) * 2048
        I("ds_read_b64_tr_b16 %s, v%d offset:%d" % (vr(R0 + 4 * e, 2), 11 + (e & 1), o_))
        I("ds_read_b64_tr_b16 %s, v%d offset:%d" % (vr(R0 + 4 * e + 2, 2), 11 + (e & 1), o_ + 512))
    I("v_bfe_u32 v8, v%d, 6, 2" % vL16)
    I("v_bfe_u32 v9, v%d, 8, 1" % vL16)
    I("v_cmp_eq_u32 vcc, v8, v9")
    I("v_mov_b32 v8, s%d" % sONES)
    I("v_add_u32 v10, s%d, v%d" % (sSOFF, vL16))
    for j in range(4):
        I("v_cndmask_b32 v%d, 0, v8, vcc" % (28 + j))
    for e in range(8):
        I("s_waitcnt lgkmcnt(%d)" % (14 - 2 * e))
        t = 0 if one else (e & 1)
        mf16(20 + 4 * t, 28, R0 + 4 * e, 0 if (first and e < (1 if one else 2)) else None)
    if last:
        I("s_add_u32 s%d, s%d, %d" % (sT0, sHEND, HOLD))
    else:
        I("s_add_u32 s%d, s%d, %d" % (sT0, sPR, c + 2 + HOLD))
    I("v_mov_b32 v8, s%d" % sT0)
    I("v_mov_b32 v9, v%d" % (20 if one else 24))
    if out == "w3":
        I("s_lshl_b32 s%d, s%d, 9" % (sT1, sPR))
        I("s_lshl_b32 s%d, s%d, 7" % (sT2, sLW))
        I("s_add_u32 s%d, s%d, s%d" % (sT1, sT1, sT2))
        I("v_add_u32 v13, s%d, v19" % sT1)
        I("s_lshl_b32 s%d, s%d, 2" % (sT1, sPR))
        I("v_add_u32 v14, s%d, v%d" % (sT1, vCNT))
        I("v_mov_b32 v9, 1")
        I("s_mov_b32 exec_hi, 0")
        I("ds_write_b32 v13, v20 offset:1536")
        I("ds_write_b32 v13, v24 offset:1792")
        I("s_mov_b64 exec, 1")
        I("ds_add_u32 v14, v9 offset:%d" % C_CS3)
        I("s_mov_b64 exec, -1")
    elif out:
        lwmul, base, tstr, cnt = out
        I("s_mul_i32 s%d, s%d, %d" % (sT1, sLW, lwmul))
        I("s_lshl_b32 s%d, s%d, 7" % (sT2, sPR))
        I("s_add_u32 s%d, s%d, s%d" % (sT1, sT1, sT2))
        I("v_add_u32 v13, s%d, v19" % sT1)
        I("v_mov_b32 v9, 1")
        I("s_mov_b32 exec_hi, 0")
        I("ds_write_b32 v13, v20 offset:%d" % base)
        if not one:
            I("ds_write_b32 v13, v24 offset:%d" % (base + tstr))
        I("s_mov_b64 exec, 1")
        I("ds_add_u32 v%d, v9 offset:%d" % (vCNT, cnt))
        I("s_mov_b64 exec, -1")
    for e in range(8):
        I("ds_read_b128 %s, v10 offset:%d" % (vr(R0 + 4 * e), e * 1024 if quarter is None else (quarter + (e >> 2)) * 16384 + (e & 3) * 1024))
    I("s_waitcnt lgkmcnt(0)")
    if not noh:
        I("ds_write_b32 v1, v8")
    if name == "RQ":
        hts("cs%d" % c)


def l0_only(fn):
    S = a.newlabel("L0O")
    I("s_cmp_eq_u32 s%d, 0" % sLAYER)
    I("s_cbranch_scc0 %s" % S)
    fn()
    a.label(S)


def hook():
    I("s_cmp_eq_u32 s%d, 7" % sW)
    I("s_cbranch_scc0 NOHOOK")
    I("v_mov_b32 v24, 1")
    I("ds_write_b32 v%d, v24 offset:%d" % (vCNT, C_PH))
    I("s_cmp_eq_u32 s2, 0")
    I("s_cbranch_scc0 NOHOOK")
    srd(8, sDBG, 256)
    I("v_mov_b32 v151, 0")
    I("v_mov_b32 v150, %d" % WS_EP)
    I("v_and_b32 v152, -16, v152")
    I("v_add_co_u32 v152, vcc, 16, v152")
    I("v_addc_co_u32 v153, vcc, 0, v153, vcc")
    I("v_not_b32 v154, v152")
    I("v_not_b32 v155, v153")
    I("s_mov_b64 exec, 1")
    I("buffer_store_dwordx4 v[152:155], v151, s[8:11], 0 offen sc1")
    I("buffer_store_dwordx2 v[152:153], v150, s[4:7], 0 offen sc1")
    I("s_mov_b64 exec, -1")
    a.label("NOHOOK")


def q_late():
    srd(12, sWQKV, 512 * 3072)
    I("v_mul_u32_u24 v25, 3072, v16")
    I("v_add_u32 v25, v25, v17")
    I("v_mul_u32_u24 v26, %d, v18" % (128 * 3072))
    I("v_add_u32 v26, v26, v25")
    I("v_xor_b32 v27, 32, v26")
    q_loads(2)


def hts_out():
    if TS and "hts" in EXP:
        I("s_lshl_b32 s100, s2, 2")
        I("s_add_u32 s100, s100, s%d" % sW)
        I("s_lshl_b32 s100, s100, 8")
        I("s_add_u32 s100, s100, %d" % (WS_TS + 0x40000 - 1024))
        I("v_lshrrev_b32 v28, 2, v%d" % vL16)
        I("buffer_store_dword v255, v28, s[4:7], s100 offen")
        I("s_waitcnt vmcnt(0)")


def kv_addr():
    I("s_lshl_b32 s%d, s%d, 12" % (sSOFF, sW))
    I("s_sub_u32 s%d, s%d, 16384" % (sSOFF, sSOFF))


a.label("RK")
I("s_cmp_eq_u32 s%d, 0" % sLAYER)
I("s_cbranch_scc1 RK0")
for c in range(4):
    I("s_add_u32 s%d, s%d, %d" % (sISS, sCBASE, c))
    I("s_cmp_gt_u32 s%d, s%d" % (sFREE, sISS))
    I("s_cbranch_scc1 RQ_F%d" % c)
    I("s_call_b64 %s, LD_FREE" % sr(sRET))
    a.label("RQ_F%d" % c)
    kv_addr()
    I("v_add_u32 v10, s%d, v%d" % (sSOFF, vL16))
    for e in range(4):
        I("ds_write_b128 v10, %s offset:%d" % (vr(32 + 16 * c + 4 * e), c * 16384 + e * 1024))
    I("s_add_u32 s%d, s%d, 1" % (sPUB, sISS))
    if c == 3:
        I("s_add_u32 s%d, s%d, s%d" % (sPUB, sPUB, sPR))
    pub(sPUB)
I("s_setpc_b64 %s" % sr(sRET2))
a.label("RK0")
hq = Q("vm", 63)
for c in range(args.kla):
    for _ in range(4):
        hq.issue(("kv", c))
for st in args.rk0.split(","):
    if st[0] == "L":
        kv_loads(int(st[1]))
        for _ in range(4):
            hq.issue(("kv", int(st[1])))
    elif st[0] == "P":
        c = int(st[1])
        waitcnt(hq.cnt_for(("kv", c)))
        if c == 3:
            I("s_add_u32 s%d, s%d, 4" % (sPUB, sPR))
        else:
            I("s_mov_b32 s%d, %d" % (sPUB, c + 1))
        pub(sPUB)
        hts("pubkv%d" % c)
    elif st == "H":
        hook()
    elif st == "Q":
        q_late()
        for _ in range(8):
            hq.issue()
    elif st == "S0":
        res_cs("RQ", -2, vWH, 0, True, False, False, None, addr=kv_addr, noh=True, quarter=0)
    elif st == "S1":
        res_cs("RQ", 2, vWH, 1, False, False, False, (256, 0, 512, C_CSA), addr=kv_addr, quarter=2)
I("s_setprio %d" % args.csprio)
I("s_setpc_b64 %s" % sr(sRET2))
a.label("RQ")
res_fill("RQ", 4, 2, 0, True)
l0_only(lambda: (res_cs("RQ", 4, vWH, 2, True, True, True, (256, 1024, 0, C_CSQ)), hts_out()))
I("s_setpc_b64 %s" % sr(sRET2))


def cs3(j):
    I("s_lshl_b32 s%d, s%d, 9" % (sT1, sLW))
    I("s_add_u32 s%d, s%d, 768" % (sT1, sT1))
    I("s_add_u32 s%d, s%d, 256" % (sT2, sT1))
    return ("s%d" % sT1, "s%d" % sT2, C_CSB)


def l3_part(j0, j1):
    srd(12, sW3, 512 * 3584)
    I("v_mul_u32_u24 v12, 3584, v16")
    I("v_lshl_add_u32 v12, v18, 6, v12")
    I("v_add_u32 v12, v12, v17")
    I("v_xor_b32 v13, 32, v12")
    I("s_lshl_b32 s%d, s%d, 8" % (sQ0, sM5))
    I("s_lshl_b32 s%d, s%d, 7" % (sT1, sPR))
    I("s_add_u32 s%d, s%d, s%d" % (sQ0, sQ0, sT1))
    I("s_mul_i32 s%d, s%d, %d" % (sT1, sLW, 64 * 3584))
    I("s_add_u32 s%d, s%d, s%d" % (sQ0, sQ0, sT1))
    I("s_add_u32 s%d, s%d, %d" % (sQ0, sQ0, j0 * 128 * 3584))
    for j in range(j0, j1):
        for e in range(8):
            I("buffer_load_dwordx4 %s, v%d, s[12:15], s%d offen" % (vr(128 + 32 * j + 4 * e), 12 + (e & 1), sQ0))
            I("s_add_u32 s%d, s%d, %d" % (sQ0, sQ0, 8 * 3584 + (64 * 3584 if e == 7 else 0)))


def r3_addr(j):
    I("s_lshl_b32 s%d, s%d, 2" % (sSOFF, sPR))
    I("s_add_u32 s%d, s%d, %d" % (sSOFF, sSOFF, CH_P5 + j))
    I("s_and_b32 s%d, s%d, 7" % (sSOFF, sSOFF))
    I("s_lshl_b32 s%d, s%d, 1" % (sSOFF, sSOFF))
    I("s_add_u32 s%d, s%d, s%d" % (sSOFF, sSOFF, sLW))
    I("s_lshl_b32 s%d, s%d, 13" % (sSOFF, sSOFF))


a.label("R3")
I("s_cmp_ge_u32 s%d, 14" % sM5)
I("s_cbranch_scc0 R3_GO")
I("v_mov_b32 v%d, 0x100000" % vT)
I("ds_write_b32 v1, v%d" % vT)
pub(sEND)
I("s_setpc_b64 %s" % sr(sRET2))
a.label("R3_GO")
for j in range(4):
    I("s_lshl_b32 s%d, s%d, 2" % (sISS, sPR))
    I("s_add_u32 s%d, s%d, s%d" % (sISS, sISS, sCBASE))
    I("s_add_u32 s%d, s%d, %d" % (sISS, sISS, CH_P5 + j))
    I("s_cmp_gt_u32 s%d, s%d" % (sFREE, sISS))
    I("s_cbranch_scc1 R3_F%d" % j)
    I("s_call_b64 %s, LD_FREE" % sr(sRET))
    a.label("R3_F%d" % j)
    if j == 0 and args.l3at == 3:
        l0_only(lambda: l3_part(0, 4))
    r3_addr(j)
    I("v_add_u32 v10, s%d, v%d" % (sSOFF, vL16))
    I("s_waitcnt vmcnt(%d)" % (24 - 8 * j))
    for e in range(8):
        I("ds_write_b128 v10, %s offset:%d" % (vr(128 + 32 * j + 4 * e), e * 1024))
    if j == 3:
        pub(sEND)
    else:
        I("s_add_u32 s%d, s%d, 1" % (sPUB, sISS))
        pub(sPUB)
l0_only(lambda: [res_cs("R3", 0, vWN, 3 + j, j == 0, False, j == 3, "w3" if j == 3 else None, addr=(lambda j=j: r3_addr(j)), noh=(j < 3)) for j in range(4)])
I("s_setpc_b64 %s" % sr(sRET2))
a.label("L3")
I("s_cmp_ge_u32 s%d, 14" % sM5)
I("s_cbranch_scc1 L3_X")
I("s_cmp_eq_u32 s%d, 0" % sLAYER)
I("s_cbranch_scc0 L3_X")
l3_part(0, 4)
a.label("L3_X")
I("s_setpc_b64 %s" % sr(sRET2))

a.label("LD_FREE")
I("s_mov_b32 s%d, 0" % sSPIN)
a.label("LD_FREE_L")
I("s_cmp_gt_u32 s%d, s%d" % (sFREE, sISS))
I("s_cbranch_scc1 LD_FREE_D")
I("ds_read_b128 v[28:31], v%d offset:%d" % (vCNT, C_D))
I("ds_read_b128 v[10:13], v%d offset:%d" % (vCNT, C_H))
I("s_waitcnt lgkmcnt(0)")
I("v_min3_u32 v28, v28, v29, v30")
I("v_min3_u32 v28, v28, v31, v10")
I("v_min3_u32 v28, v28, v11, v12")
I("v_min_u32 v28, v28, v13")
I("v_readfirstlane_b32 s%d, v28" % sFREE)
I("s_add_u32 s%d, s%d, %d" % (sFREE, sFREE, 8 - HOLD))
I("s_sleep %d" % args.hsleep)
I("s_add_u32 s%d, s%d, 1" % (sSPIN, sSPIN))
I("s_cmp_lt_u32 s%d, %d" % (sSPIN, SPIN_L))
I("s_cbranch_scc1 LD_FREE_L")
I("s_endpgm")
a.label("LD_FREE_D")
I("s_setpc_b64 %s" % sr(sRET))

a.label("LD_RUN")
I("v_mul_u32_u24 v25, s%d, v16" % sSTR)
I("v_mul_u32_u24 v24, s%d, v18" % sXX)
I("v_add3_u32 v25, v25, v24, v15")
I("s_lshl_b32 s%d, s%d, 3" % (sT0, sSTR))
I("s_mul_i32 s%d, s%d, s%d" % (sT0, sT0, sLW))
I("s_add_u32 s%d, s%d, s%d" % (sSOFF, sCOL, sT0))
a.label("LD_CHUNK")
I("s_cmp_gt_u32 s%d, s%d" % (sFREE, sISS))
I("s_cbranch_scc1 LD_GO")
I("s_mov_b32 s%d, 0" % sSPIN)
a.label("LD_SPIN")
I("ds_read_b128 v[28:31], v%d offset:%d" % (vCNT, C_D))
I("ds_read_b128 v[10:13], v%d offset:%d" % (vCNT, C_H))
I("s_waitcnt lgkmcnt(0)")
I("v_min3_u32 v28, v28, v29, v30")
I("v_min3_u32 v28, v28, v31, v10")
I("v_min3_u32 v28, v28, v11, v12")
I("v_min_u32 v28, v28, v13")
I("v_readfirstlane_b32 s%d, v28" % sFREE)
I("s_add_u32 s%d, s%d, %d" % (sFREE, sFREE, 8 - HOLD))
I("s_cmp_gt_u32 s%d, s%d" % (sFREE, sISS))
I("s_cbranch_scc1 LD_GO")
I("s_sub_u32 s%d, s%d, s%d" % (sT0, sISS, sPUB))
for d in range(LAG, 0, -1):
    I("s_cmp_eq_u32 s%d, %d" % (sT0, d))
    I("s_cbranch_scc1 LD_PW%d" % d)
I("s_sleep %d" % args.hsleep)
I("s_add_u32 s%d, s%d, 1" % (sSPIN, sSPIN))
I("s_cmp_lt_u32 s%d, %d" % (sSPIN, SPIN_L))
I("s_cbranch_scc1 LD_SPIN")
I("s_endpgm")
for d in range(LAG, 0, -1):
    a.label("LD_PW%d" % d)
    I("s_waitcnt vmcnt(%d)" % (8 * (d - 1)))
    if d > 1:
        I("s_branch LD_PWX")
a.label("LD_PWX")
I("s_add_u32 s%d, s%d, 1" % (sPUB, sPUB))
pub(sPUB)
I("s_branch LD_SPIN")
a.label("LD_GO")
if "now1" in EXP:
    I("s_cmp_eq_u32 s%d, 1" % sLAYER)
    I("s_cselect_b32 s14, 0, s14")
if args.wnt:
    I("s_cmp_eq_u32 s14, %d" % (512 * 1024 if args.wnt == "small" else 1792 * 1024))
    I("s_cbranch_scc0 LD_PLAIN")
    for e in range(8):
        I("buffer_load_dwordx4 v25, s[12:15], s%d offen nt lds" % sSOFF)
        I("s_add_u32 m0, m0, 2048")
        I("s_add_u32 s%d, s%d, s%d" % (sSOFF, sSOFF, sJ1 if e == 3 else sJ2 if e == 7 else sD1))
    I("s_branch LD_ISSUED")
    a.label("LD_PLAIN")
for e in range(8):
    I("buffer_load_dwordx4 v25, s[12:15], s%d offen lds" % sSOFF)
    I("s_add_u32 m0, m0, 2048")
    I("s_add_u32 s%d, s%d, s%d" % (sSOFF, sSOFF, sJ1 if e == 3 else sJ2 if e == 7 else sD1))
a.label("LD_ISSUED")
I("s_and_b32 m0, m0, 0x1ffff")
I("s_add_u32 s%d, s%d, 1" % (sISS, sISS))
I("s_sub_u32 s%d, s%d, s%d" % (sT0, sISS, sPUB))
I("s_cmp_le_u32 s%d, %d" % (sT0, LAG))
I("s_cbranch_scc1 LD_NOPUB")
I("s_waitcnt vmcnt(%d)" % (8 * LAG))
I("s_add_u32 s%d, s%d, 1" % (sPUB, sPUB))
pub(sPUB)
a.label("LD_NOPUB")
I("s_sub_u32 s%d, s%d, 1" % (sNCH, sNCH))
I("s_cmp_lg_u32 s%d, 0" % sNCH)
I("s_cbranch_scc1 LD_CHUNK")
I("s_setpc_b64 %s" % sr(sRET))

a.label("INITW")
I("s_lshr_b32 s90, s2, 3")


def dbg_byte():
    srd(12, sDBG, 256)
    I("s_getreg_b32 s88, hwreg(HW_REG_XCC_ID)")
    I("s_and_b32 s88, s88, 15")
    I("v_mov_b32 v25, 0")
    I("s_mov_b32 s%d, 0" % sSPIN)
    a.label("NC_L")
    I("buffer_load_dwordx4 v[28:31], v25, s[12:15], 0 offen sc1")
    I("s_waitcnt vmcnt(0)")
    I("v_xor_b32 v30, v28, v30")
    I("v_xor_b32 v31, v29, v31")
    I("v_and_b32 v30, v30, v31")
    I("v_readfirstlane_b32 s%d, v30" % sT0)
    I("s_cmp_eq_u32 s%d, -1" % sT0)
    I("s_cbranch_scc1 NC_D")
    I("s_sleep 8")
    I("s_add_u32 s%d, s%d, 1" % (sSPIN, sSPIN))
    I("s_cmp_lt_u32 s%d, %d" % (sSPIN, SPIN_G))
    I("s_cbranch_scc1 NC_L")
    I("s_endpgm")
    a.label("NC_D")
    I("v_readfirstlane_b32 s92, v28")
    I("v_readfirstlane_b32 s93, v29")
    I("v_or_b32 v28, s88, v28")
    I("s_lshl_b32 s%d, s%d, 7" % (sT0, sM))
    I("s_lshl_b32 s%d, s%d, 3" % (sT1, sSG))
    I("s_add_u32 s%d, s%d, s%d" % (sT0, sT0, sT1))
    I("s_add_u32 s%d, s%d, %d" % (sT0, sT0, WS_IM))
    I("s_lshl_b32 s%d, s%d, 7" % (sT1, sSG))
    I("s_lshl_b32 s%d, s%d, 3" % (sT2, sM))
    I("s_add_u32 s%d, s%d, s%d" % (sT1, sT1, sT2))
    I("s_add_u32 s%d, s%d, %d" % (sT1, sT1, WS_IS))
    I("s_mov_b64 exec, 1")
    I("buffer_store_dwordx2 v[28:29], v25, s[4:7], s%d offen sc1" % sT0)
    I("buffer_store_dwordx2 v[28:29], v25, s[4:7], s%d offen sc1" % sT1)
    I("s_mov_b64 exec, -1")


def tlb_warm():
    for k, p in enumerate((sWO, sW1, sW2, sW3, sW4, sOUT)):
        I("s_load_dword s%d, %s, 0" % (60 + k, sr(p)))
    I("s_mul_i32 s%d, s%d, %d" % (sT0, sSG, SGB))
    I("s_add_u32 s98, s%d, s%d" % (sWSP, sT0))
    I("s_addc_u32 s99, s%d, 0" % (sWSP + 1))
    I("s_load_dword s67, s[98:99], 0")
    I("s_load_dword s68, s[98:99], 0x80000")
    I("s_load_dword s69, s[98:99], 0xd0000")


def handshake():
    I("s_lshl_b32 s%d, s%d, 7" % (sT0, sM))
    I("s_add_u32 s%d, s%d, %d" % (sT0, sT0, WS_IM))
    I("s_lshl_b32 s%d, s%d, 7" % (sT1, sSG))
    I("s_add_u32 s%d, s%d, %d" % (sT1, sT1, WS_IS))
    I("v_bfe_u32 v24, v%d, 4, 4" % vL16)
    I("v_lshlrev_b32 v24, 3, v24")
    I("v_add_u32 v25, s%d, v24" % sT0)
    I("s_mov_b64 exec, 0xffff0000")
    I("v_add_u32 v25, s%d, v24" % sT1)
    I("s_mov_b64 exec, -1")
    I("s_mov_b32 s%d, 0" % sSPIN)
    a.label("HS_L")
    I("buffer_load_dwordx2 v[28:29], v25, s[4:7], 0 offen sc1")
    I("s_waitcnt vmcnt(0)")
    I("v_and_b32 v30, -16, v28")
    I("v_xor_b32 v30, s92, v30")
    I("v_xor_b32 v31, s93, v29")
    I("v_or_b32 v30, v30, v31")
    I("v_cmp_eq_u32 vcc, 0, v30")
    I("s_cmp_eq_u64 vcc, -1")
    I("s_cbranch_scc1 HS_D")
    I("s_sleep 4")
    I("s_add_u32 s%d, s%d, 1" % (sSPIN, sSPIN))
    I("s_cmp_lt_u32 s%d, %d" % (sSPIN, SPIN_G))
    I("s_cbranch_scc1 HS_L")
    I("s_endpgm")
    a.label("HS_D")
    I("v_and_b32 v28, 15, v28")
    I("v_cmp_eq_u32 vcc, s88, v28")
    I("s_lshr_b32 s%d, vcc_lo, 16" % sT0)
    I("s_cmp_eq_u32 s%d, 0xffff" % sT0)
    I("s_cselect_b32 s%d, 3, 2" % sT0)
    I("v_mov_b32 v24, s%d" % sT0)
    I("ds_write_b32 v%d, v24 offset:%d" % (vCNT, C_GO))


WTAB = {"wqkv": (sWQKV, 512 * 3072), "wo": (sWO, 512 * 1024), "w1": (sW1, 512 * 1024), "w2": (sW2, 512 * 1024),
        "w3": (sW3, 512 * 3584), "w4": (sW4, 1792 * 1024)}


def touch(name):
    if name in ("A", "B", "H0", "H1", "C", "ST"):
        off, per = {"A": (O_A, 8192), "B": (O_B, 8192), "H0": (O_H + 32768, 8192), "H1": (O_H + HLY + 32768, 8192),
                    "C": (O_C, 28672), "ST": (O_ST, 3072)}[name]
        I("s_mul_i32 s%d, s%d, %d" % (sT0, sSG, SGB))
        I("s_mul_i32 s%d, s%d, %d" % (sT1, sM, per))
        I("s_add_u32 s%d, s%d, s%d" % (sT0, sT0, sT1))
        I("s_add_u32 s%d, s%d, %d" % (sT0, sT0, off))
        left = per
        while left > 0:
            if left < 8192:
                I("s_mov_b64 exec, 0x%x" % ((1 << (left // 128)) - 1))
            I("buffer_load_dword v6, v7, s[4:7], s%d offen sc1" % sT0)
            if left < 8192:
                I("s_mov_b64 exec, -1")
            left -= 8192
            if left > 0:
                I("s_add_u32 s%d, s%d, 8192" % (sT0, sT0))
    elif name == "WB1":
        S = a.newlabel("WB")
        I("s_cmp_eq_u32 s90, 31")
        I("s_cbranch_scc0 %s" % S)
        I("buffer_wbl2 sc1")
        a.label(S)
    elif name == "WB":
        I("buffer_wbl2 sc1")
    elif name == "TLB":
        tlb_warm()
    elif name == "DB":
        dbg_byte()
    elif name == "HS":
        handshake()
    elif name == "WAIT":
        I("s_waitcnt vmcnt(0)")
    elif name.startswith("M"):
        ptr, nb = WTAB[name[1:]]
        srd(8, ptr, nb)
        I("s_mul_i32 s%d, s2, %d" % (sT0, nb // 256))
        nl = nb // 256 // 128
        I("s_mov_b32 exec_lo, 0x%x" % ((1 << min(nl, 32)) - 1))
        I("s_mov_b32 exec_hi, 0x%x" % ((1 << max(nl - 32, 0)) - 1))
        I("buffer_load_dword v6, v7, s[8:11], s%d offen sc1" % sT0)
        I("s_mov_b64 exec, -1")
    else:
        part = None
        if name[-1] in "ab" and name[:-1] in WTAB:
            part, name = name[-1], name[:-1]
        ptr, nb = WTAB[name]
        srd(8, ptr, nb)
        base, nbb = (0, nb) if part is None else (0, nb // 2) if part == "a" else (nb // 2, nb // 2)
        I("s_mul_i32 s%d, s90, %d" % (sT0, nbb // 32))
        if base:
            I("s_add_u32 s%d, s%d, %d" % (sT0, sT0, base))
        left = nbb // 32
        while left > 0:
            if left < 8192:
                I("s_mov_b64 exec, 0x%x" % ((1 << (left // 128)) - 1))
            I("buffer_load_dword v6, v7, s[8:11], s%d offen sc1" % sT0)
            if left < 8192:
                I("s_mov_b64 exec, -1")
            left -= 8192
            if left > 0:
                I("s_add_u32 s%d, s%d, 8192" % (sT0, sT0))


def stouch(name, who="all"):
    half = None
    if "/" in name:
        name, half = name.split("/")
    if name in ("A", "B", "H0", "H1", "C", "ST"):
        off, per = {"A": (O_A, 8192), "B": (O_B, 8192), "H0": (O_H + 32768, 8192), "H1": (O_H + HLY + 32768, 8192),
                    "C": (O_C, 28672), "ST": (O_ST, 3072)}[name]
        ptr = sWSP
        I("s_mul_i32 s%d, s%d, %d" % (sT0, sSG, SGB))
        I("s_mul_i32 s%d, s%d, %d" % (sT1, sM, per))
        I("s_add_u32 s%d, s%d, s%d" % (sT0, sT0, sT1))
        I("s_add_u32 s%d, s%d, %d" % (sT0, sT0, off))
    elif name.startswith("M"):
        ptr, nb = WTAB[name[1:]]
        per = nb // 256
        I("s_mul_i32 s%d, s2, %d" % (sT0, per))
    else:
        ptr, nb = WTAB[name]
        per = nb // 32
        I("s_lshr_b32 s%d, s2, 3" % sT0)
        I("s_mul_i32 s%d, s%d, %d" % (sT0, sT0, per))
    if half is not None:
        per //= 2
        if half == "1":
            I("s_add_u32 s%d, s%d, %d" % (sT0, sT0, per))
    assert per % 512 == 0
    I("s_add_u32 s98, s%d, s%d" % (ptr, sT0))
    I("s_addc_u32 s99, s%d, 0" % (ptr + 1))
    I("s_mov_b32 s%d, %d" % (sT2, per // 512))
    L = a.newlabel("SP")
    a.label(L)
    for j in range(8):
        I("s_load_dword s%d, s[98:99], %d" % (60 + j, j * 64))
    I("s_add_u32 s98, s98, 512")
    I("s_addc_u32 s99, s99, 0")
    I("s_sub_u32 s%d, s%d, 1" % (sT2, sT2))
    I("s_cmp_lg_u32 s%d, 0" % sT2)
    I("s_cbranch_scc1 %s" % L)


RST = {"layer": 0}


def fill_task(kind):
    ly = RST["layer"]
    if kind == "K":
        I("s_call_b64 %s, RK" % sr(sRET2))
    elif kind == "Q":
        group_call("RQ", CH_P5 + 4, CH_P5 + 4)
        I("s_setprio %d" % args.tprio)
    elif kind == "L":
        I("s_call_b64 %s, L3" % sr(sRET2))
    else:
        group_call("R3", CH_N, 0x100000)
        I("s_add_u32 s%d, s%d, 1" % (sLAYER, sLAYER))
        I("s_add_u32 s%d, s%d, %d" % (sCBASE, sCBASE, CH_N))


def tasks(spec):
    for item in spec.split(";"):
        if not item:
            continue
        thr, names = item.split(":")
        off = C_D
        if thr.startswith("p"):
            off, thr = C_PG, thr[1:]
        elif thr.startswith("i"):
            off, thr = C_GI, thr[1:]
        elif thr.startswith("f"):
            off, thr = C_HV, thr[1:]
        if int(thr) > 0:
            L, D = a.newlabel("TW"), a.newlabel("TWD")
            I("s_mov_b32 s%d, 0" % sSPIN)
            a.label(L)
            I("ds_read_b32 v25, v%d offset:%d" % (vCNT, off))
            I("s_waitcnt lgkmcnt(0)")
            I("v_readfirstlane_b32 s%d, v25" % sT1)
            I("s_cmp_ge_u32 s%d, %s" % (sT1, thr))
            I("s_cbranch_scc1 %s" % D)
            I("s_sleep %d" % args.hsleep)
            I("s_add_u32 s%d, s%d, 1" % (sSPIN, sSPIN))
            I("s_cmp_lt_u32 s%d, %d" % (sSPIN, SPIN_L))
            I("s_cbranch_scc1 %s" % L)
            I("s_endpgm")
            a.label(D)
        for nm in names.split(","):
            if nm.startswith("s"):
                stouch(nm[1:])
            elif nm in ("K", "Q", "L", "F"):
                fill_task(nm)
            else:
                touch(nm)
    I("s_waitcnt vmcnt(0) lgkmcnt(0)")
    I("s_endpgm")


tasks(args.touch)
a.label("TASK6")
I("s_lshr_b32 s90, s2, 3")
tasks(args.touch6)
a.label("CODE_END")

if args.pro:
    I(".p2align 8")
    a.label("pro_kernel")
    I("s_cmp_ge_u32 s2, 256")
    I("s_cbranch_scc1 PRO_END")
    if args.pro != "nop":
        I("s_load_dwordx16 s[16:31], s[0:1], 0")
        I("s_load_dwordx8 s[32:39], s[0:1], 64")
        I("v_lshlrev_b32 v1, 7, v0")
        I("s_lshr_b32 s40, s2, 3")
        I("s_and_b32 s41, s2, 7")
        I("s_getpc_b64 s[58:59]")
        a.label("PRO_PC")
        I("s_sub_u32 s58, s58, PRO_PC-%s" % KN)
        I("s_subb_u32 s59, s59, 0")
        I("s_lshl_b32 s42, s40, 11")
        I("v_and_b32 v2, 0x7ff, v1")
        I("v_add_u32 v2, s42, v2")
        I("v_min_u32 v2, CODE_END-%s-4, v2" % KN)
        I("global_load_dword v3, v2, s[58:59]")
        I("s_waitcnt lgkmcnt(0)")

        def pf(ptr, total, start_expr, nbytes):
            I("s_mov_b32 s8, s%d" % ptr)
            I("s_and_b32 s9, s%d, 0xffff" % (ptr + 1))
            start_expr()
            I("s_add_u32 s10, s43, %d" % nbytes)
            I("s_mov_b32 s11, 0x20000")
            for j in range(-(-nbytes // 32768)):
                I("buffer_load_dword v4, v1, s[8:11], s43 offen")
                I("s_add_u32 s43, s43, 32768")
        pf(sWQKV, 0, lambda: I("s_mul_i32 s43, s40, %d" % (512 * 3072 // 32)), 512 * 3072 // 32)
        pf(sX, 0, lambda: (I("s_lshl_b32 s43, s41, 18"), I("s_lshl_b32 s44, s40, 13"), I("s_add_u32 s43, s43, s44")), 8192)
        for p in (sWO, sW1, sW2):
            if "x" in args.pro:
                pf(p, 0, lambda: I("s_mul_i32 s43, s40, 16384"), 16384)
            else:
                pf(p, 0, lambda: I("s_mul_i32 s43, s2, 2048"), 2048)
        for p in (sW3, sW4):
            pf(p, 0, lambda: I("s_mul_i32 s43, s2, 7168"), 7168)
        pf(sWPHI, 0, lambda: I("s_mul_i32 s43, s40, 512"), 512)
        if "b" in args.pro:
            for off, per in ((O_A, 8192), (O_B, 8192), (O_H + 32768, 8192), (O_ST, 3072)):
                pf(sWSP, 0, lambda: (I("s_lshl_b32 s43, s41, 1"), I("s_lshr_b32 s44, s40, 4"), I("s_add_u32 s43, s43, s44"), I("s_mul_i32 s43, s43, %d" % SGB),
                                     I("s_and_b32 s44, s40, 15"), I("s_mul_i32 s44, s44, %d" % per), I("s_add_u32 s43, s43, s44"), I("s_add_u32 s43, s43, %d" % off)), per)
        I("s_waitcnt vmcnt(0)")
    a.label("PRO_END")
    I("s_endpgm")
body = a.finalize()
if args.align and not args.pro:
    body, nw_, nn_ = align8(body, args.align, args.alnop)
    print('widened', nw_, 'padded', nn_, file=sys.stderr)
hdr = open("interleave_layers__linear_kernel_hedgehog__mixer_s_mlp__prompt.s.ref").read().split("\n")
top = []
for ln in hdr:
    if ln.startswith("; @launch"):
        if args.pro:
            top.append("; @launch kernel=pro_kernel grid=(256,1,1) block=(256,1,1) lds=0")
            top.append("; @launch kernel=%s grid=(256,1,1) block=(512,1,1) lds=%d" % (KN, LDS_BYTES))
        else:
            top.append("; @launch grid=(256,1,1) block=(512,1,1) lds=%d" % LDS_BYTES)
        break
    top.append(ln)
out = "\n".join(top) + "\n" + """.amdgcn_target "amdgcn-amd-amdhsa--gfx950"
.text
.globl %s
.p2align 8
.type %s,@function
""" % (KN, KN) + body + "\n" + """.section .rodata,"a"
.p2align 6
.amdhsa_kernel %s
  .amdhsa_next_free_vgpr 256
  .amdhsa_next_free_sgpr 102
  .amdhsa_accum_offset 256
  .amdhsa_group_segment_fixed_size 0
  .amdhsa_kernarg_size 96
  .amdhsa_user_sgpr_count 2
  .amdhsa_user_sgpr_kernarg_segment_ptr 1
  .amdhsa_system_sgpr_workgroup_id_x 1
.end_amdhsa_kernel
""" % KN
if args.pro:
    out += """.p2align 6
.amdhsa_kernel pro_kernel
  .amdhsa_next_free_vgpr 64
  .amdhsa_next_free_sgpr 102
  .amdhsa_accum_offset 64
  .amdhsa_group_segment_fixed_size 0
  .amdhsa_kernarg_size 96
  .amdhsa_user_sgpr_count 2
  .amdhsa_user_sgpr_kernarg_segment_ptr 1
  .amdhsa_system_sgpr_workgroup_id_x 1
.end_amdhsa_kernel
"""
open(args.o, "w").write(out)
if TS:
    open(args.o + ".tsnames", "w").write("\n".join(tsnames))
print("instructions:", len(a.ins), "nops inserted:", a.nops, file=sys.stderr)
```
